```python
import torch

def _softmax(x, axis=-1):
    return torch.softmax(x, dim=axis)
def _gelu(x):
    return torch.nn.functional.gelu(x, approximate="tanh")
def _silu(x):
    return torch.nn.functional.silu(x)
def _sigmoid(x):
    return torch.sigmoid(x)
def _layernorm(x, axis=-1, eps=1e-5):
    m = x.mean(dim=axis, keepdim=True)
    v = x.var(dim=axis, keepdim=True, unbiased=False)
    return (x - m) / torch.sqrt(v + eps)
def _scatter_add(tgt, idx, src, axis=0):
    return tgt.clone().index_add_(axis, idx, src)
def _segment_sum(src, seg, n):
    out = torch.zeros((n,) + src.shape[1:], dtype=src.dtype)
    return out.index_add_(0, seg, src)
def _pad(x, pw):
    flat = tuple(v for pair in reversed(pw) for v in pair)
    return torch.nn.functional.pad(x, flat)

kernel_name = 'sequential_preLN__linear_attn_block__dense_activation_silu__prompt'

def setup_inputs():

    _w = (lambda a: (lambda t: t.to(torch.bfloat16) if t.is_floating_point() else t)(torch.as_tensor(a)))
    def _A_setup():
        B, S, D = 1, 2048, 512
        return {
            "x": _w((lambda *s: torch.randn(*s, dtype=torch.bfloat16) * 0.05)(B, S, D)),
            "wqkv": _w((lambda *s: torch.randn(*s, dtype=torch.bfloat16) * 0.05)(D, 3 * D)),
            "wo": _w((lambda *s: torch.randn(*s, dtype=torch.bfloat16) * 0.05)(D, D)),
        }
    _A_in = _A_setup()

    def _B_setup():
        B, S, D, F = 1, 2048, 512, 1792
        return {
            "x": _w((lambda *s: torch.randn(*s, dtype=torch.bfloat16) * 0.05)(B, S, D)),
            "w1": _w((lambda *s: torch.randn(*s, dtype=torch.bfloat16) * 0.8)(D, F) * (D ** -0.5)),
            "w2": _w((lambda *s: torch.randn(*s, dtype=torch.bfloat16) * 0.1)(F, D) * (F ** -0.5)),
        }
    _B_in = _B_setup()

    return {
        "A_x": _A_in["x"],
        "A_wqkv": _A_in["wqkv"],
        "A_wo": _A_in["wo"],
        "B_x": _B_in["x"],
        "B_w1": _B_in["w1"],
        "B_w2": _B_in["w2"],
    }

def reference(A_x, A_wqkv, A_wo, B_x, B_w1, B_w2):
    def _A_ref(x, wqkv, wo):
        B, S, D = x.shape
        H = 32; Dh = D // H
        qkv = (lambda x, *d: x.permute(*d))((x @ wqkv).reshape(B, S, 3, H, Dh), 2, 0, 3, 1, 4)
        q, k, v = qkv[0], qkv[1], qkv[2]
        phi = lambda t: torch.where(t > 0, t + 1, torch.exp(t)) + 1e-6
        pq, pk = phi(q), phi(k)
        kv = torch.einsum("bhsd,bhse->bhde", pk, v)
        z = torch.einsum("bhsd->bhd", pk)
        num = torch.einsum("bhqd,bhde->bhqe", pq, kv)
        den = torch.einsum("bhqd,bhd->bhq", pq, z)[..., None] + 1e-6
        o = num / den
        return (lambda x, *d: x.permute(*d))(o, 0, 2, 1, 3).reshape(B, S, D) @ wo

    def _B_ref(x, w1, w2):
        h = torch.einsum("bsd,df->bsf", x, w1)
        h = _silu(h)
        out = torch.einsum("bsf,fd->bsd", h, w2)
        return out

    x = A_x
    h = x + _A_ref(_layernorm(x, axis=-1), A_wqkv, A_wo)
    h2 = h + _B_ref(_layernorm(h, axis=-1), B_w1, B_w2)
    return h2
```

```python
import re
class K:
    def __init__(self, prefix="k"):
        self.L = []
        self.lbl = 0
        self.prefix = prefix
    def __call__(self, s, *a):
        if a: s = s % a
        if s.startswith("buffer_"):
            m = re.search(r"offset:(\d+)", s)
            assert not m or int(m.group(1)) < 4096, "MUBUF offset too large: " + s
        if s.startswith("ds_"):
            m = re.search(r"offset:(\d+)", s)
            assert not m or int(m.group(1)) < 65536, "DS offset too large: " + s
        self.L.append("  " + s)
    def c(self, s):
        self.L.append("  ; " + s)
    def label(self, name):
        self.L.append(name + ":")
    def new_label(self, p="L"):
        self.lbl += 1
        return "%s_%s_%d" % (self.prefix, p, self.lbl)
    def text(self):
        return "\n".join(self.L) + "\n"

def v(i, n=1):
    return "v%d" % i if n == 1 else "v[%d:%d]" % (i, i + n - 1)
def s(i, n=1):
    return "s%d" % i if n == 1 else "s[%d:%d]" % (i, i + n - 1)

def kernel_header(name):
    return (".globl %s\n.p2align 8\n.type %s,@function\n%s:\n" % (name, name, name))

def kernel_desc(name, vgpr, sgpr=102, kernarg=72):
    vg = max(8, (vgpr + 7) // 8 * 8)
    return ('.amdhsa_kernel %s\n  .amdhsa_next_free_vgpr %d\n  .amdhsa_next_free_sgpr %d\n  .amdhsa_accum_offset %d\n'
            '  .amdhsa_group_segment_fixed_size 0\n  .amdhsa_kernarg_size %d\n  .amdhsa_user_sgpr_count 2\n'
            '  .amdhsa_user_sgpr_kernarg_segment_ptr 1\n  .amdhsa_system_sgpr_workgroup_id_x 1\n.end_amdhsa_kernel\n'
            % (name, vgpr, sgpr, min(256, (vgpr + 3) // 4 * 4), kernarg))
```

```python
from asmlib import *
import os
STSUF = os.environ.get('STSUF', '')
WS_PQ   = 0x000000
WS_H    = 0x200000
WS_H1   = 0x400000
WS_W2P  = 0xB00000
WS_WOP  = 0xCC0000
WS_KV   = 0xD40000
WS_HST  = 0xD50000
WS_END  = 0xD90000

def srd(k, base_s, lo, hi, size, add=0):
    if add:
        k("s_add_u32 s%d, s%d, 0x%x", base_s, lo, add)
        k("s_addc_u32 s%d, s%d, 0", base_s + 1, hi)
    else:
        k("s_mov_b32 s%d, s%d", base_s, lo)
        k("s_mov_b32 s%d, s%d", base_s + 1, hi)
    k("s_mov_b32 s%d, 0x%x", base_s + 2, size)
    k("s_mov_b32 s%d, 0x20000", base_s + 3)

def bf16r(k, dst, src):
    k("v_cvt_pk_bf16_f32 %s, %s, %s", dst, src, src)
    k("v_lshlrev_b32 %s, 16, %s", dst, dst)

def ln_stats(k, vsum, vsq, vrstd, vmr, t0, t1):
    k("v_mul_f32 %s, 0x3b000000, %s", vsum, vsum)
    k("v_mul_f32 %s, 0x3b000000, %s", vsq, vsq)
    k("v_fma_f32 %s, -%s, %s, %s", vsq, vsum, vsum, vsq)
    k("v_max_f32 %s, 0, %s", vsq, vsq)
    bf16r(k, vsum, vsum)
    bf16r(k, vsq, vsq)
    k("v_add_f32 %s, 0x3727c5ac, %s", vsq, vsq)
    bf16r(k, vsq, vsq)
    k("v_sqrt_f32 %s, %s", vsq, vsq)
    k("s_nop 0")
    bf16r(k, vsq, vsq)
    k("v_rcp_f32 %s, %s", vrstd, vsq)
    k("s_nop 0")
    k("v_mul_f32 %s, %s, %s", vmr, vsum, vrstd)
```

```python
from asmlib import *
from common import *

LDA = 1024
LDS_STAGE = 32768
LDS_STAT = 0
STG0 = 4096
O_ROWSUM = LDS_STAT
O_ROWSQ = LDS_STAT + 512
O_COLSUM = LDS_STAT + 1024
O_RST = LDS_STAT + 1536
O_MR = LDS_STAT + 2048
LDS_TOTAL1 = STG0 + 4 * LDS_STAGE

class G1:
    RS0 = 16; RS1 = 17; RQ0 = 18; RQ1 = 19; CS0 = 20; CS1 = 21; ONES = 22
    ACC = 64
    FA = 128
    FB = 144
    AADDR = 160
    BADDR = 168
    VOA_E = 172; VOA_O = 173; VOB = 174
    T0 = 176

def emit_preamble(k, ldb):
    g = G1
    k.c("DMA lane offsets for A")
    k("v_lshrrev_b32 v2, 3, v1")
    k("v_lshlrev_b32 v2, 10, v2")
    k("v_and_b32 v3, 7, v1")
    k("v_lshrrev_b32 v4, 4, v1")
    k("v_xor_b32 v5, v3, v4")
    k("v_lshl_add_u32 %s, v5, 4, v2", v(g.VOA_E))
    k("v_xor_b32 v5, 4, v5")
    k("v_lshl_add_u32 %s, v5, 4, v2", v(g.VOA_O))
    k.c("DMA lane offsets for B: c=(lane&15)^((lane>>4)<<2)")
    k("v_and_b32 v3, 15, v1")
    k("v_lshlrev_b32 v5, 2, v4")
    k("v_xor_b32 v10, v3, v5")
    k("s_mov_b32 s6, %d", ldb)
    k("v_mul_lo_u32 v11, v4, s6")
    k.c("A frag addresses")
    k("v_and_b32 v2, 31, v1")
    k("v_lshrrev_b32 v3, 5, v1")
    k("v_lshrrev_b32 v4, 1, v2")
    k("v_and_b32 v4, 7, v4")
    k("v_xor_b32 v4, v4, v3")
    k("v_lshlrev_b32 v5, 7, v2")
    k("s_lshl_b32 s6, s4, 13")
    k("v_add_u32 v5, s6, v5")
    k("v_add_u32 v5, %d, v5", STG0)
    for t in range(4):
        k("v_xor_b32 v6, %d, v4", 2 * t)
        k("v_lshl_add_u32 %s, v6, 4, v5", v(g.AADDR + t))
        k("v_add_u32 %s, 0x10000, %s", v(g.AADDR + 4 + t), v(g.AADDR + t))
    k.c("B frag addresses")
    k("v_lshrrev_b32 v2, 4, v1")
    k("v_and_b32 v3, 15, v1")
    k("v_lshrrev_b32 v4, 5, v1")
    k("v_lshlrev_b32 v4, 3, v4")
    k("v_lshrrev_b32 v5, 2, v3")
    k("v_add_u32 v4, v4, v5")
    k("v_lshlrev_b32 v4, 8, v4")
    k("v_and_b32 v6, 1, v2")
    k("v_lshlrev_b32 v6, 1, v6")
    k("v_bfe_u32 v7, v3, 1, 1")
    k("v_add_u32 v6, v6, v7")
    k("s_lshl_b32 s6, s5, 3")
    k("v_add_u32 v6, s6, v6")
    k("v_lshlrev_b32 v7, 2, v5")
    k("v_and_b32 v8, 1, v3")
    k("v_lshlrev_b32 v8, 3, v8")
    k("v_add_u32 v4, %d, v4", STG0)
    for tn in range(2):
        k("v_add_u32 v9, %d, v6", 4 * tn)
        k("v_xor_b32 v9, v9, v7")
        k("v_lshlrev_b32 v9, 4, v9")
        k("v_add3_u32 %s, v9, v4, v8", v(g.BADDR + tn))
        k("v_add_u32 %s, 0x10000, %s", v(g.BADDR + 2 + tn), v(g.BADDR + tn))
    k.c("stats init")
    for r in (g.RS0, g.RS1, g.RQ0, g.RQ1, g.CS0, g.CS1):
        k("v_mov_b32 %s, 0", v(r))
    k("v_mov_b32 %s, 0x3f803f80", v(g.ONES))
    k.c("zero LDS stat arrays (2KB)")
    k("v_lshlrev_b32 v2, 3, v0")
    k("v_mov_b32 v4, 0")
    k("v_mov_b32 v5, 0")
    k("ds_write_b64 v2, v[4:5] offset:%d", LDS_STAT)

def dma_stage(k, st, ldb, sA_base, sB_base, sW4096):
    g = G1
    b = st % 4
    for qq in range(4):
        k("s_add_u32 m0, %s, %d", s(sW4096), b * LDS_STAGE + qq * 1024)
        k("s_add_u32 s7, %s, %d", s(sA_base), qq * 8 * LDA + st * 128)
        k("buffer_load_dwordx4 %s, s[8:11], s7 offen lds", v(g.VOA_E if qq % 2 == 0 else g.VOA_O))
    for qq in range(4):
        k("s_add_u32 m0, %s, %d", s(sW4096), b * LDS_STAGE + 16384 + qq * 1024)
        k("s_add_u32 s7, %s, %d", s(sB_base), (st * 64 + qq * 4) * ldb)
        k("buffer_load_dwordx4 %s, s[12:15], s7 offen lds", v(g.VOB))

def frag_reads(st, t, fb):
    g = G1
    b = st % 4
    hi = 1 if b >= 2 else 0
    bo = (b % 2) * LDS_STAGE
    r = []
    r.append("ds_read_b128 %s, %s offset:%d" % (v(g.FA + fb * 8 + 0, 4), v(g.AADDR + hi * 4 + t), bo))
    for u in range(2):
        r.append("ds_read_b64_tr_b16 %s, %s offset:%d" % (v(g.FB + fb * 8 + 0 + 2 * u, 2), v(g.BADDR + hi * 2 + 0), bo + 16384 + (16 * t + 4 * u) * 256))
    for u in range(2):
        r.append("ds_read_b64_tr_b16 %s, %s offset:%d" % (v(g.FB + fb * 8 + 4 + 2 * u, 2), v(g.BADDR + hi * 2 + 1), bo + 16384 + (16 * t + 4 * u) * 256))
    r.append("ds_read_b128 %s, %s offset:%d" % (v(g.FA + fb * 8 + 4, 4), v(g.AADDR + hi * 4 + t), bo + 4096))
    return r

def mfma(i, j, fb, transposed, first):
    g = G1
    a = v(g.FA + fb * 8 + 4 * i, 4)
    b = v(g.FB + fb * 8 + 4 * j, 4)
    d = v(g.ACC + (i * 2 + j) * 16, 16)
    c = "0" if first else d
    if transposed:
        return "v_mfma_f32_32x32x16_bf16 %s, %s, %s, %s" % (d, b, a, c)
    return "v_mfma_f32_32x32x16_bf16 %s, %s, %s, %s" % (d, a, b, c)

def main_loop(k, ldb, sA_base, sB_base, sW4096, transposed, rowstats, colstats, hook_first=None, hook_st0=None, nst=8):
    g = G1
    for st in range(2):
        dma_stage(k, st, ldb, sA_base, sB_base, sW4096)
    k("s_waitcnt vmcnt(8)")
    k("s_barrier")
    if hook_first: hook_first(k)
    for st in range(2, 4):
        dma_stage(k, st, ldb, sA_base, sB_base, sW4096)
    for r in frag_reads(0, 0, 0):
        k(r)
    for st in range(nst):
        for t in range(4):
            gt = 4 * st + t
            cur = gt & 1
            nxt = cur ^ 1
            last = (st == nst - 1 and t == 3)
            first = (gt == 0)
            k("s_waitcnt lgkmcnt(0)")
            if t == 3 and st < nst - 1:
                issued_upto = min(nst - 1, st + 3)
                k("s_waitcnt vmcnt(%d)", 8 * (issued_upto - (st + 1)))
                k("s_barrier")
                if st == 0 and hook_st0: hook_st0(k)
                if st + 4 < nst:
                    dma_stage(k, st + 4, ldb, sA_base, sB_base, sW4096)
                rd = frag_reads(st + 1, 0, nxt)
            elif not last:
                rd = frag_reads(st, t + 1, nxt)
            else:
                rd = []
            order = [(0, 0), (0, 1), (1, 0), (1, 1)]
            for n, (i, j) in enumerate(order):
                k(mfma(i, j, cur, transposed, first))
                for r in rd[2 * n:2 * n + 2]:
                    k(r)
            if rowstats:
                L = k.new_label("Lrs")
                k("s_cmp_eq_u32 s5, %d", gt & 1)
                k("s_cbranch_scc0 %s", L)
                for i in range(2):
                    for r in range(4):
                        a = v(g.FA + cur * 8 + 4 * i + r)
                        k("v_dot2_f32_bf16 %s, %s, %s, %s", v(g.RS0 + i), a, v(g.ONES), v(g.RS0 + i))
                        k("v_dot2_f32_bf16 %s, %s, %s, %s", v(g.RQ0 + i), a, a, v(g.RQ0 + i))
                k.label(L)
            if colstats:
                L = k.new_label("Lcs")
                k("s_cmp_eq_u32 s4, %d", gt & 1)
                k("s_cbranch_scc0 %s", L)
                for j in range(2):
                    for r in range(4):
                        b = v(g.FB + cur * 8 + 4 * j + r)
                        k("v_dot2_f32_bf16 %s, %s, %s, %s", v(g.CS0 + j), b, v(g.ONES), v(g.CS0 + j))
                k.label(L)

def stats_to_lds(k, rowstats, colstats):
    g = G1
    k("v_and_b32 v2, 31, v1")
    k("v_lshlrev_b32 v2, 2, v2")
    if rowstats:
        k("s_lshl_b32 s6, s4, 8")
        k("v_add_u32 v3, s6, v2")
        k("ds_add_f32 v3, %s offset:%d", v(g.RS0), O_ROWSUM)
        k("ds_add_f32 v3, %s offset:%d", v(g.RS1), O_ROWSUM + 128)
        k("ds_add_f32 v3, %s offset:%d", v(g.RQ0), O_ROWSQ)
        k("ds_add_f32 v3, %s offset:%d", v(g.RQ1), O_ROWSQ + 128)
    if colstats:
        k("s_lshl_b32 s6, s5, 8")
        k("v_add_u32 v3, s6, v2")
        k("ds_add_f32 v3, %s offset:%d", v(g.CS0), O_COLSUM)
        k("ds_add_f32 v3, %s offset:%d", v(g.CS1), O_COLSUM + 128)
    k("s_waitcnt lgkmcnt(0)")
    k("s_barrier")
```

```python
from asmlib import *
from common import *
import core1
from core1 import G1, O_ROWSUM, O_ROWSQ, O_COLSUM, O_RST, O_MR, LDS_TOTAL1

NWG1 = 228
LDB1 = 3072

def phi_pair(k, a, b, out, t0, t1, t2):
    k("v_min_f32 %s, 0, %s", t0, a)
    k("v_min_f32 %s, 0, %s", t1, b)
    k("v_mul_f32 %s, 0x3fb8aa3b, %s", t0, t0)
    k("v_mul_f32 %s, 0x3fb8aa3b, %s", t1, t1)
    k("v_exp_f32 %s, %s", t0, t0)
    k("v_exp_f32 %s, %s", t1, t1)
    k("v_max_f32 %s, 0, %s", a, a)
    k("v_max_f32 %s, 0, %s", b, b)
    k("v_add_f32 %s, %s, %s", a, a, t0)
    k("v_add_f32 %s, %s, %s", b, b, t1)
    k("v_add_f32 %s, 0x358637bd, %s", a, a)
    k("v_add_f32 %s, 0x358637bd, %s", b, b)
    k("v_cvt_pk_bf16_f32 %s, %s, %s", out, a, b)

def round_pair(k, a, b, t):
    k("v_cvt_pk_bf16_f32 %s, %s, %s", t, a, b)
    k("v_lshlrev_b32 %s, 16, %s", a, t)
    k("v_and_b32 %s, 0xffff0000, %s", b, t)

def p1_kernel():
    g = G1
    k = K("p1")
    k("s_cmp_ge_u32 s2, %d", NWG1)
    k("s_cbranch_scc1 P1_END")
    k("s_load_dwordx4 s[40:43], s[0:1], 0")
    k("s_load_dwordx2 s[44:45], s[0:1], 16")
    k("s_load_dwordx2 s[46:47], s[0:1], 40")
    k("s_load_dwordx4 s[48:51], s[0:1], 56")
    k("v_and_b32 v1, 63, v0")
    k("v_lshrrev_b32 v2, 6, v0")
    k("s_nop 0")
    k("v_readfirstlane_b32 s3, v2")
    k("s_lshr_b32 s4, s3, 1")
    k("s_and_b32 s5, s3, 1")
    k("s_cmp_ge_u32 s2, 192")
    k("s_cbranch_scc1 P1_REPACK")
    k.c("tile mapping (XCD-aware): x=wg&7,i=wg>>3 ; rb=(x&3)*4+(i&3) ; ct=(x>>2)*6+(i>>2)")
    k("s_and_b32 s6, s2, 7")
    k("s_lshr_b32 s7, s2, 3")
    k("s_and_b32 s31, s6, 3")
    k("s_lshl_b32 s31, s31, 2")
    k("s_and_b32 s32, s7, 3")
    k("s_add_u32 s31, s31, s32")
    k("s_lshr_b32 s32, s6, 2")
    k("s_mul_i32 s32, s32, 6")
    k("s_lshr_b32 s7, s7, 2")
    k("s_add_u32 s32, s32, s7")
    core1.emit_preamble(k, LDB1)
    k("s_waitcnt lgkmcnt(0)")
    srd(k, 8, 40, 41, 2048 * 1024)
    srd(k, 12, 42, 43, 512 * 3072)
    srd(k, 16, 50, 51, 0x200000, WS_PQ)
    srd(k, 20, 50, 51, 32 * 1088, WS_KV)
    srd(k, 24, 48, 49, 256)
    k("s_lshl_b32 s28, s31, 17")
    k("s_lshl_b32 s6, s3, 15")
    k("s_add_u32 s28, s28, s6")
    k("s_lshl_b32 s30, s3, 12")
    k("s_add_u32 s30, s30, %d", core1.STG0)
    k("s_mul_i32 s29, s3, %d", 16 * LDB1)
    k("s_mov_b32 s33, 1")
    k("s_cmp_lt_u32 s32, 4")
    k("s_cbranch_scc0 P1_KV")
    k("v_lshl_add_u32 %s, v10, 4, v11", v(g.VOB))
    k("s_lshl_b32 s6, s32, 8")
    k("s_add_u32 s29, s29, s6")
    core1.main_loop(k, LDB1, 28, 29, 30, True, True, True)
    core1.stats_to_lds(k, True, True)
    k.c("Q epilogue (transposed: lane=row)")
    k("v_and_b32 v2, 31, v1")
    k("v_lshrrev_b32 v3, 5, v1")
    k("v_lshlrev_b32 v4, 2, v2")
    k("s_lshl_b32 s6, s4, 8")
    k("v_add_u32 v4, s6, v4")
    k("ds_read_b32 v8, v4 offset:%d", O_ROWSUM)
    k("ds_read_b32 v9, v4 offset:%d", O_ROWSUM + 128)
    k("ds_read_b32 v10, v4 offset:%d", O_ROWSQ)
    k("ds_read_b32 v11, v4 offset:%d", O_ROWSQ + 128)
    k("v_lshlrev_b32 v5, 4, v3")
    k("s_lshl_b32 s6, s5, 8")
    k("v_add_u32 v5, s6, v5")
    CSR = 176
    for j in range(2):
        for q in range(4):
            k("ds_read_b128 %s, v5 offset:%d", v(CSR + (j * 4 + q) * 4, 4), O_COLSUM + (32 * j + 8 * q) * 4)
    k("s_waitcnt lgkmcnt(0)")
    ln_stats(k, "v8", "v10", "v12", "v13", None, None)
    ln_stats(k, "v9", "v11", "v14", "v15", None, None)
    k("v_lshlrev_b32 v6, 4, v1")
    k("s_lshl_b32 s34, s31, 2")
    k("s_lshl_b32 s6, s4, 1")
    k("s_add_u32 s34, s34, s6")
    k("s_lshl_b32 s34, s34, 5")
    k("s_lshl_b32 s6, s32, 3")
    k("s_add_u32 s34, s34, s6")
    k("s_lshl_b32 s6, s5, 2")
    k("s_add_u32 s34, s34, s6")
    k("s_lshl_b32 s34, s34, 10")
    OUT = 208
    for i in range(2):
        rstd = "v12" if i == 0 else "v14"
        mr = "v13" if i == 0 else "v15"
        for j in range(2):
            a0 = g.ACC + (i * 2 + j) * 16
            for hd in range(2):
                for qq in range(2):
                    q = 2 * hd + qq
                    for pr in range(2):
                        ra = a0 + 4 * q + 2 * pr
                        ca = CSR + (j * 4 + q) * 4 + 2 * pr
                        k("v_mul_f32 v24, %s, %s", v(ra), rstd)
                        k("v_mul_f32 v25, %s, %s", v(ra + 1), rstd)
                        k("v_fma_f32 v24, -%s, %s, v24", mr, v(ca))
                        k("v_fma_f32 v25, -%s, %s, v25", mr, v(ca + 1))
                        round_pair(k, "v24", "v25", "v26")
                        phi_pair(k, "v24", "v25", v(OUT + qq * 2 + pr), "v26", "v27", None)
                k("s_add_u32 s7, s34, %d", (i * 32 + 2 * j + hd) * 1024)
                k("buffer_store_dwordx4 %s, v6, s[16:19], s7 offen", v(OUT, 4))
                k("s_nop 1")
    k("s_endpgm")
    k.label("P1_KV")
    k("s_sub_u32 s34, s32, 4")
    k.c("colmap: ((c>>2)&1)*1024 + (c>>3)*64 + (c&3)*16")
    k("v_bfe_u32 v2, v10, 2, 1")
    k("v_lshlrev_b32 v2, 10, v2")
    k("v_lshrrev_b32 v3, 3, v10")
    k("v_lshl_add_u32 v2, v3, 6, v2")
    k("v_and_b32 v3, 3, v10")
    k("v_lshl_add_u32 v2, v3, 4, v2")
    k("v_add_u32 %s, v2, v11", v(g.VOB))
    k("s_lshl_b32 s6, s34, 7")
    k("s_add_u32 s29, s29, s6")
    k("s_add_u32 s29, s29, 1024")
    k.c("ticket (wave 0 only)")
    k("v_mov_b32 v23, 1")
    k("s_cmp_eq_u32 s3, 0")
    k("s_cbranch_scc0 P1_NOTICK")
    k("s_lshl_b32 s6, s34, 2")
    k("v_mov_b32 v3, s6")
    k("s_mov_b64 exec, 1")
    k("buffer_atomic_add v23, v3, s[24:27], 0 offen sc0")
    k("s_mov_b64 exec, -1")
    k.label("P1_NOTICK")
    def hook_first(k):
        k("s_cmp_eq_u32 s3, 0")
        k("s_cbranch_scc0 P1_NOZERO")
        k("v_readfirstlane_b32 s33, v23")
        k("s_nop 0")
        k("s_cmp_eq_u32 s33, 0")
        k("s_cbranch_scc0 P1_NOZERO")
        k.c("owner: zero the kv accumulators of this column tile (4352 bytes)")
        k("s_mul_i32 s6, s34, 4352")
        k("s_add_u32 s6, s6, 0x%x", WS_KV)
        k("s_add_u32 s36, s50, s6")
        k("s_addc_u32 s37, s51, 0")
        k("s_mov_b32 s38, 4352")
        k("s_mov_b32 s39, 0x20000")
        k("v_mov_b32 v24, 0"); k("v_mov_b32 v25, 0"); k("v_mov_b32 v26, 0"); k("v_mov_b32 v27, 0")
        k("v_lshlrev_b32 v2, 4, v1")
        for z in range(4):
            k("buffer_store_dwordx4 v[24:27], v2, s[36:39], 0 offen offset:%d sc1", z * 1024)
        k("v_add_u32 v2, 4096, v2")
        k("buffer_store_dwordx4 v[24:27], v2, s[36:39], 0 offen sc1")
        k.label("P1_NOZERO")
    def hook_st0(k):
        k("s_cmp_eq_u32 s33, 0")
        k("s_cbranch_scc0 P1_NOFLAG")
        k("s_lshl_b32 s6, s34, 2")
        k("s_add_u32 s6, s6, 32")
        k("v_mov_b32 v3, s6")
        k("v_mov_b32 v2, 1")
        k("s_mov_b64 exec, 1")
        k("buffer_store_dword v2, v3, s[24:27], 0 offen sc1")
        k("s_mov_b64 exec, -1")
        k.label("P1_NOFLAG")
    core1.main_loop(k, LDB1, 28, 29, 30, False, True, True, hook_first, hook_st0)
    core1.stats_to_lds(k, True, True)
    k.c("KV epilogue (normal: lane=col)")
    k.c("early poll of the zero-init flag")
    k("s_lshl_b32 s6, s34, 2")
    k("s_add_u32 s6, s6, 32")
    k("v_mov_b32 v7, s6")
    k("buffer_load_dword v23, v7, s[24:27], 0 offen sc1")
    k.c("row stats lane-per-row")
    k("v_lshlrev_b32 v4, 2, v1")
    k("s_lshl_b32 s6, s4, 8")
    k("v_add_u32 v4, s6, v4")
    k("ds_read_b32 v8, v4 offset:%d", O_ROWSUM)
    k("ds_read_b32 v10, v4 offset:%d", O_ROWSQ)
    k("v_and_b32 v2, 31, v1")
    k("v_lshlrev_b32 v5, 2, v2")
    k("s_lshl_b32 s6, s5, 8")
    k("v_add_u32 v5, s6, v5")
    k("ds_read_b32 v14, v5 offset:%d", O_COLSUM)
    k("ds_read_b32 v15, v5 offset:%d", O_COLSUM + 128)
    k("s_waitcnt lgkmcnt(0)")
    ln_stats(k, "v8", "v10", "v12", "v13", None, None)
    k("ds_write_b32 v4, v12 offset:%d", O_RST)
    k("ds_write_b32 v4, v13 offset:%d", O_MR)
    k("s_waitcnt lgkmcnt(0)")
    k("v_lshrrev_b32 v3, 5, v1")
    k("v_lshlrev_b32 v5, 4, v3")
    k("s_lshl_b32 s6, s4, 8")
    k("v_add_u32 v5, s6, v5")
    RST = 176; MRR = 208
    for i in range(2):
        for q in range(4):
            k("ds_read_b128 %s, v5 offset:%d", v(RST + (i * 4 + q) * 4, 4), O_RST + (32 * i + 8 * q) * 4)
            k("ds_read_b128 %s, v5 offset:%d", v(MRR + (i * 4 + q) * 4, 4), O_MR + (32 * i + 8 * q) * 4)
    k("s_waitcnt lgkmcnt(0)")
    KP = 128; VP = 144
    for i in range(2):
        for j in range(2):
            a0 = g.ACC + (i * 2 + j) * 16
            cs = "v14" if j == 0 else "v15"
            for m in range(8):
                r = 2 * m
                rs = RST + i * 16 + r
                mrr = MRR + i * 16 + r
                k("v_mul_f32 v24, %s, %s", v(a0 + r), v(rs))
                k("v_mul_f32 v25, %s, %s", v(a0 + r + 1), v(rs + 1))
                k("v_fma_f32 v24, -%s, %s, v24", v(mrr), cs)
                k("v_fma_f32 v25, -%s, %s, v25", v(mrr + 1), cs)
                if j == 0:
                    round_pair(k, "v24", "v25", "v26")
                    phi_pair(k, "v24", "v25", v(KP + i * 8 + m), "v26", "v27", None)
                else:
                    k("v_cvt_pk_bf16_f32 %s, v24, v25", v(VP + i * 8 + m))
    k("s_nop 1")
    DKV = 176; DZ = 192
    n = 0
    for i in range(2):
        for u in range(2):
            k("v_mfma_f32_32x32x16_bf16 %s, %s, %s, %s", v(DKV, 16), v(VP + i * 8 + 4 * u, 4), v(KP + i * 8 + 4 * u, 4), "0" if n == 0 else v(DKV, 16))
            n += 1
    for r in range(4):
        k("v_mov_b32 %s, 0x3f803f80", v(24 + r))
    k("s_nop 1")
    n = 0
    for i in range(2):
        for u in range(2):
            k("v_mfma_f32_32x32x16_bf16 %s, v[24:27], %s, %s", v(DZ, 16), v(KP + i * 8 + 4 * u, 4), "0" if n == 0 else v(DZ, 16))
            n += 1
    k.c("address: head*1088 + (4h'*16 + d)*4 ; head = 4j + 2wc + ((l>>4)&1)")
    k("v_bfe_u32 v2, v1, 4, 1")
    k("s_lshl_b32 s6, s34, 2")
    k("s_lshl_b32 s7, s5, 1")
    k("s_add_u32 s6, s6, s7")
    k("v_add_u32 v2, s6, v2")
    k("s_movk_i32 s6, 1088")
    k("v_mul_lo_u32 v2, v2, s6")
    k("v_lshrrev_b32 v3, 5, v1")
    k("v_lshl_add_u32 v2, v3, 8, v2")
    k("v_and_b32 v3, 15, v1")
    k("v_lshl_add_u32 v2, v3, 2, v2")
    k("v_and_b32 v3, 16, v1")
    k("v_cmp_ne_u32 vcc, 0, v3")
    k.c("wait for flag")
    k.label("P1_POLL")
    k("s_waitcnt vmcnt(0)")
    k("v_readfirstlane_b32 s6, v23")
    k("s_cmp_eq_u32 s6, 1")
    k("s_cbranch_scc1 P1_POLLED")
    k("buffer_load_dword v23, v7, s[24:27], 0 offen sc1")
    k("s_branch P1_POLL")
    k.label("P1_POLLED")
    k("s_nop 7")
    for i8 in range(8):
        k("v_cndmask_b32 v24, %s, %s, vcc", v(DKV + i8), v(DKV + 8 + i8))
        k("buffer_atomic_add_f32 v24, v2, s[20:23], 0 offen offset:%d", ((i8 & 3) + 8 * (i8 >> 2)) * 64)
        k("s_nop 1")
    k("s_mov_b32 exec_hi, 0")
    k("buffer_atomic_add_f32 %s, v2, s[20:23], 0 offen offset:1024", v(DZ))
    k("s_endpgm")
    k.label("P1_REPACK")
    k("s_sub_u32 s31, s2, 192")
    k("s_waitcnt lgkmcnt(0)")
    k("s_cmp_lt_u32 s31, 28")
    k("s_cbranch_scc0 P1_RP_WO")
    srd(k, 8, 46, 47, 1792 * 1024)
    srd(k, 16, 50, 51, 112 * 16 * 1024, WS_W2P)
    k("s_branch P1_RP_GO")
    k.label("P1_RP_WO")
    k("s_sub_u32 s31, s31, 28")
    srd(k, 8, 44, 45, 512 * 1024)
    srd(k, 16, 50, 51, 32 * 16 * 1024, WS_WOP)
    k.label("P1_RP_GO")
    k.c("DMA rows 64r+16w .. +15 (1KB each) to LDS at (16w+q)*1024")
    k("v_lshlrev_b32 v2, 4, v1")
    k("s_lshl_b32 s6, s31, 16")
    k("s_lshl_b32 s7, s3, 14")
    k("s_add_u32 s6, s6, s7")
    for q in range(16):
        k("s_add_u32 m0, s7, %d", q * 1024)
        k("s_add_u32 s28, s6, %d", q * 1024)
        k("buffer_load_dwordx4 v2, s[8:11], s28 offen lds")
    k.c("tr-read address: (16w + 4(G>>1) + (i4>>2))*1024 + (16(G&1) + 4(i4&3))*2")
    k("v_lshrrev_b32 v3, 5, v1")
    k("v_lshlrev_b32 v3, 2, v3")
    k("v_bfe_u32 v4, v1, 2, 2")
    k("v_add_u32 v3, v3, v4")
    k("v_lshlrev_b32 v3, 10, v3")
    k("v_add_u32 v3, s7, v3")
    k("v_bfe_u32 v4, v1, 4, 1")
    k("v_lshl_add_u32 v3, v4, 5, v3")
    k("v_and_b32 v4, 3, v1")
    k("v_lshl_add_u32 v3, v4, 3, v3")
    k.c("out block = ((4r + w)*16 + j)*1024")
    k("s_lshl_b32 s6, s31, 2")
    k("s_add_u32 s6, s6, s3")
    k("s_lshl_b32 s6, s6, 14")
    k("s_waitcnt vmcnt(0)")
    for j in range(16):
        rr = 16 + (j % 4) * 4
        k("ds_read_b64_tr_b16 %s, v3 offset:%d", v(rr, 2), j * 64)
        k("ds_read_b64_tr_b16 %s, v3 offset:%d", v(rr + 2, 2), 8192 + j * 64)
        k("s_waitcnt lgkmcnt(0)")
        k("s_add_u32 s7, s6, %d", j * 1024)
        k("buffer_store_dwordx4 %s, v2, s[16:19], s7 offen", v(rr, 4))
    k.label("P1_END")
    k("s_endpgm")
    return k.text()
```

```python
from asmlib import *
from common import *

NWG2 = 256
LDS2 = 65536
def desc():
    return ("p2_kernel", NWG2, 256, LDS2, p2_kernel(), 320)

PQ = 32
WO = 96
KVR = 160
XR = 224
OT = 16
def a(i, n=1):
    return "a%d" % i if n == 1 else "a[%d:%d]" % (i, i + n - 1)

def p2_kernel():
    k = K("p2")
    k("s_cmp_ge_u32 s2, %d", NWG2)
    k("s_cbranch_scc1 P2_END")
    k("s_load_dwordx2 s[40:41], s[0:1], 0")
    k("s_load_dwordx2 s[50:51], s[0:1], 64")
    k("v_and_b32 v1, 63, v0")
    k("v_lshrrev_b32 v2, 6, v0")
    k("s_nop 0")
    k("v_readfirstlane_b32 s3, v2")
    k("s_and_b32 s6, s2, 7")
    k("s_lshr_b32 s7, s2, 3")
    k("s_and_b32 s4, s6, 3")
    k("s_lshl_b32 s4, s4, 3")
    k("s_and_b32 s5, s7, 7")
    k("s_add_u32 s4, s4, s5")
    k("s_lshr_b32 s5, s6, 2")
    k("s_lshl_b32 s5, s5, 2")
    k("s_lshr_b32 s7, s7, 3")
    k("s_add_u32 s5, s5, s7")
    k("v_lshlrev_b32 v2, 4, v1")
    k.c("kv lane offset: (m<16 ? m*64 : 1024) + h'*16")
    k("v_and_b32 v3, 31, v1")
    k("v_lshlrev_b32 v4, 6, v3")
    k("v_mov_b32 v5, 1024")
    k("v_cmp_gt_u32 vcc, 16, v3")
    k("s_nop 1")
    k("v_cndmask_b32 v4, v5, v4, vcc")
    k("v_lshrrev_b32 v5, 5, v1")
    k("v_lshl_add_u32 v4, v5, 4, v4")
    k.c("x/h lane offset: (row)*1024 + (col)*2 with row = 64rbk+32(w>>1)+(l&31), col = 64ctile + 32(w&1) + 4h'")
    k("s_lshl_b32 s6, s4, 6")
    k("s_lshr_b32 s7, s3, 1")
    k("s_lshl_b32 s7, s7, 5")
    k("s_add_u32 s6, s6, s7")
    k("v_add_u32 v6, s6, v3")
    k("v_lshlrev_b32 v6, 10, v6")
    k("v_lshl_add_u32 v6, v5, 3, v6")
    k("s_lshl_b32 s7, s5, 7")
    k("s_and_b32 s8, s3, 1")
    k("s_lshl_b32 s8, s8, 6")
    k("s_add_u32 s7, s7, s8")
    k("v_add_u32 v6, s7, v6")
    k("s_waitcnt lgkmcnt(0)")
    srd(k, 8, 50, 51, 0x200000, WS_PQ)
    srd(k, 12, 50, 51, 32 * 16 * 1024, WS_WOP)
    srd(k, 16, 50, 51, 32 * 1088, WS_KV)
    srd(k, 20, 40, 41, 2048 * 1024)
    srd(k, 24, 50, 51, 0x200000, WS_H)
    srd(k, 28, 50, 51, 2048 * 16 * 8, WS_HST)
    k.c("scalar bases")
    k("s_lshl_b32 s32, s4, 1")
    k("s_lshl_b32 s32, s32, 5")
    k("s_lshl_b32 s6, s3, 3")
    k("s_add_u32 s32, s32, s6")
    k("s_lshl_b32 s32, s32, 10")
    k("s_lshl_b32 s33, s6, 4")
    k("s_lshl_b32 s7, s5, 1")
    k("s_add_u32 s33, s33, s7")
    k("s_lshl_b32 s33, s33, 10")
    k("s_mul_i32 s34, s6, 1088")
    k.c("issue loads")
    for q in range(4):
        k("buffer_load_dwordx2 %s, v6, s[20:23], 0 offen offset:%d", v(XR + 2 * q, 2), 16 * q)
    for hh in range(8):
        k("s_add_u32 s7, s34, %d", hh * 1088)
        k("buffer_load_dwordx4 %s, v4, s[16:19], s7 offen", v(KVR + hh * 8, 4))
        k("buffer_load_dwordx4 %s, v4, s[16:19], s7 offen offset:32", v(KVR + hh * 8 + 4, 4))
        for i in range(2):
            k("s_add_u32 s7, s32, %d", i * 32768 + hh * 1024)
            k("buffer_load_dwordx4 %s, v2, s[8:11], s7 offen", v(PQ + (i * 8 + hh) * 4, 4))
        k("s_add_u32 s7, s33, %d", hh * 16384)
        for j in range(2):
            k("buffer_load_dwordx4 %s, v2, s[12:15], s7 offen offset:%d", v(WO + (hh * 2 + j) * 4, 4), j * 1024)
    OTS = [16, 232]
    for hh in range(8):
        k("s_waitcnt vmcnt(%d)", 6 * (7 - hh))
        for r in range(4):
            k("v_cvt_pk_bf16_f32 %s, %s, %s", v(8 + r), v(KVR + hh * 8 + 2 * r), v(KVR + hh * 8 + 2 * r + 1))
        k("s_nop 1")
        for i in range(2):
            k("v_mfma_f32_32x32x16_bf16 %s, v[8:11], %s, 0", v(OTS[i], 16), v(PQ + (i * 8 + hh) * 4, 4))
        k("s_nop 15")
        for i in range(2):
            D = OTS[i]
            O = 248 + 4 * i
            bf16r(k, "v12", v(D + 8))
            k("v_add_f32 v12, 0x358637bd, v12")
            bf16r(k, "v12", "v12")
            k("v_rcp_f32 v12, v12")
            k("s_nop 0")
            for p in range(4):
                k("v_cvt_pk_bf16_f32 v13, %s, %s", v(D + 2 * p), v(D + 2 * p + 1))
                k("v_lshlrev_b32 v14, 16, v13")
                k("v_and_b32 v15, 0xffff0000, v13")
                k("v_mul_f32 v14, v14, v12")
                k("v_mul_f32 v15, v15, v12")
                k("v_cvt_pk_bf16_f32 %s, v14, v15", v(O + p))
        k("s_nop 1")
        for i in range(2):
            for j in range(2):
                d = a((i * 2 + j) * 16, 16)
                k("v_mfma_f32_32x32x16_bf16 %s, %s, %s, %s", d, v(WO + (hh * 2 + j) * 4, 4), v(248 + 4 * i, 4), "0" if hh == 0 else d)
    k.c("cross-wave reduction through LDS: slot (o*4 + w)*4096 + q*1024 + lane*16")
    k("s_lshl_b32 s6, s3, 12")
    k("v_add_u32 v3, s6, v2")
    k("s_nop 15")
    for o in range(4):
        for q in range(4):
            k("ds_write_b128 v3, %s offset:%d", a(o * 16 + q * 4, 4), o * 16384 + q * 1024)
    k("s_waitcnt lgkmcnt(0)")
    k("s_barrier")
    k("s_lshl_b32 s6, s3, 14")
    k("v_add_u32 v3, s6, v2")
    for src in range(4):
        for q in range(4):
            k("ds_read_b128 %s, v3 offset:%d", v(32 + src * 16 + q * 4, 4), src * 4096 + q * 1024)
    k("s_waitcnt lgkmcnt(0)")
    for r in range(16):
        k("v_add_f32 %s, %s, %s", v(32 + r), v(32 + r), v(48 + r))
        k("v_add_f32 %s, %s, %s", v(64 + r), v(64 + r), v(80 + r))
        k("v_add_f32 %s, %s, %s", v(32 + r), v(32 + r), v(64 + r))
    k.c("epilogue: h = bf16(x + bf16(attn))")
    k("v_mov_b32 v8, 0")
    k("v_mov_b32 v9, 0")
    k("v_mov_b32 v10, 0x3f803f80")
    for q in range(4):
        for p in range(2):
            r = 32 + 4 * q + 2 * p
            xr = XR + 2 * q + p
            k("v_cvt_pk_bf16_f32 v13, %s, %s", v(r), v(r + 1))
            k("v_lshlrev_b32 v14, 16, v13")
            k("v_and_b32 v15, 0xffff0000, v13")
            k("v_lshlrev_b32 v12, 16, %s", v(xr))
            k("v_and_b32 v11, 0xffff0000, %s", v(xr))
            k("v_add_f32 v14, v14, v12")
            k("v_add_f32 v15, v15, v11")
            k("v_cvt_pk_bf16_f32 %s, v14, v15", v(96 + 2 * q + p))
            k("v_dot2_f32_bf16 v8, %s, v10, v8", v(96 + 2 * q + p))
            k("v_dot2_f32_bf16 v9, %s, %s, v9", v(96 + 2 * q + p), v(96 + 2 * q + p))
        k("buffer_store_dwordx2 %s, v6, s[24:27], 0 offen offset:%d", v(96 + 2 * q, 2), 16 * q)
    k.c("row stats: combine halves, store (sum,sq) at (row*16 + 2ctile + (w&1))*8")
    k("v_mov_b32 v12, v8")
    k("v_mov_b32 v13, v9")
    k("s_nop 1")
    k("v_permlane32_swap_b32 v8, v12")
    k("v_permlane32_swap_b32 v9, v13")
    k("s_nop 1")
    k("v_add_f32 v8, v8, v12")
    k("v_add_f32 v9, v9, v13")
    k("v_lshrrev_b32 v3, 10, v6")
    k("v_lshlrev_b32 v3, 7, v3")
    k("s_lshl_b32 s6, s5, 1")
    k("s_and_b32 s7, s3, 1")
    k("s_add_u32 s6, s6, s7")
    k("s_lshl_b32 s6, s6, 3")
    k("v_add_u32 v3, s6, v3")
    k("s_mov_b32 exec_hi, 0")
    k("buffer_store_dwordx2 v[8:9], v3, s[28:31], 0 offen")
    k.label("P2_END")
    k("s_endpgm")
    return k.text()
```

```python
from asmlib import *
from common import *
import core1
from core1 import G1, O_COLSUM, LDS_TOTAL1
from p1 import round_pair

NWG3 = 224
LDB3 = 3584
def desc():
    return ("p3_kernel", NWG3, 256, LDS_TOTAL1, p3_kernel(), 256)

def silu_pair(k, a, b, out, t0, t1):
    k("v_mul_f32 %s, 0xbfb8aa3b, %s", t0, a)
    k("v_mul_f32 %s, 0xbfb8aa3b, %s", t1, b)
    k("v_exp_f32 %s, %s", t0, t0)
    k("v_exp_f32 %s, %s", t1, t1)
    k("v_add_f32 %s, 1.0, %s", t0, t0)
    k("v_add_f32 %s, 1.0, %s", t1, t1)
    k("v_rcp_f32 %s, %s", t0, t0)
    k("v_rcp_f32 %s, %s", t1, t1)
    k("v_mul_f32 %s, %s, %s", a, a, t0)
    k("v_mul_f32 %s, %s, %s", b, b, t1)
    k("v_cvt_pk_bf16_f32 %s, %s, %s", out, a, b)

def p3_kernel():
    g = G1
    k = K("p3")
    k("s_cmp_ge_u32 s2, %d", NWG3)
    k("s_cbranch_scc1 P3_END")
    k("s_load_dwordx2 s[42:43], s[0:1], 32")
    k("s_load_dwordx2 s[50:51], s[0:1], 64")
    k("v_and_b32 v1, 63, v0")
    k("v_lshrrev_b32 v2, 6, v0")
    k("s_nop 0")
    k("v_readfirstlane_b32 s3, v2")
    k("s_lshr_b32 s4, s3, 1")
    k("s_and_b32 s5, s3, 1")
    k("s_and_b32 s6, s2, 7")
    k("s_lshr_b32 s7, s2, 3")
    k("s_and_b32 s31, s6, 3")
    k("s_lshl_b32 s31, s31, 2")
    k("s_and_b32 s32, s7, 3")
    k("s_add_u32 s31, s31, s32")
    k("s_lshr_b32 s32, s6, 2")
    k("s_mul_i32 s32, s32, 7")
    k("s_lshr_b32 s7, s7, 2")
    k("s_add_u32 s32, s32, s7")
    core1.emit_preamble(k, LDB3)
    k("v_lshl_add_u32 %s, v10, 4, v11", v(g.VOB))
    k.c("hstat lane address: row*128 + h'*64 ; row = rb*128 + 64wr + (l&31) (+32 for i=1)")
    k("v_and_b32 v2, 31, v1")
    k("s_lshl_b32 s6, s31, 7")
    k("s_lshl_b32 s7, s4, 6")
    k("s_add_u32 s6, s6, s7")
    k("v_add_u32 v2, s6, v2")
    k("v_lshlrev_b32 v2, 7, v2")
    k("v_lshrrev_b32 v3, 5, v1")
    k("v_lshl_add_u32 v2, v3, 6, v2")
    k("s_waitcnt lgkmcnt(0)")
    srd(k, 8, 50, 51, 0x200000, WS_H)
    srd(k, 12, 42, 43, 512 * 3584)
    srd(k, 16, 50, 51, 64 * 112 * 1024, WS_H1)
    srd(k, 20, 50, 51, 2048 * 128, WS_HST)
    HS = 176
    k("v_add_u32 v3, 4096, v2")
    for i in range(2):
        for c in range(4):
            k("buffer_load_dwordx4 %s, %s, s[20:23], 0 offen offset:%d", v(HS + i * 16 + c * 4, 4), "v2" if i == 0 else "v3", c * 16)
    k("s_lshl_b32 s28, s31, 17")
    k("s_lshl_b32 s6, s3, 15")
    k("s_add_u32 s28, s28, s6")
    k("s_lshl_b32 s30, s3, 12")
    k("s_add_u32 s30, s30, %d", core1.STG0)
    k("s_mul_i32 s29, s3, %d", 16 * LDB3)
    k("s_lshl_b32 s6, s32, 8")
    k("s_add_u32 s29, s29, s6")
    core1.main_loop(k, LDB3, 28, 29, 30, True, False, True)
    core1.stats_to_lds(k, False, True)
    k.c("row stats from hstat partials")
    for i in range(2):
        b = HS + i * 16
        for c in range(1, 8):
            k("v_add_f32 %s, %s, %s", v(b), v(b), v(b + 2 * c))
            k("v_add_f32 %s, %s, %s", v(b + 1), v(b + 1), v(b + 2 * c + 1))
        k("v_mov_b32 %s, %s", v(b + 2), v(b))
        k("v_mov_b32 %s, %s", v(b + 3), v(b + 1))
        k("s_nop 1")
        k("v_permlane32_swap_b32 %s, %s", v(b), v(b + 2))
        k("v_permlane32_swap_b32 %s, %s", v(b + 1), v(b + 3))
        k("s_nop 1")
        k("v_add_f32 %s, %s, %s", v(b), v(b), v(b + 2))
        k("v_add_f32 %s, %s, %s", v(b + 1), v(b + 1), v(b + 3))
    k("v_mov_b32 v8, %s", v(HS)); k("v_mov_b32 v10, %s", v(HS + 1))
    k("v_mov_b32 v9, %s", v(HS + 16)); k("v_mov_b32 v11, %s", v(HS + 17))
    k("v_lshrrev_b32 v3, 5, v1")
    k("v_lshlrev_b32 v5, 4, v3")
    k("s_lshl_b32 s6, s5, 8")
    k("v_add_u32 v5, s6, v5")
    CSR = 176
    for j in range(2):
        for q in range(4):
            k("ds_read_b128 %s, v5 offset:%d", v(CSR + (j * 4 + q) * 4, 4), O_COLSUM + (32 * j + 8 * q) * 4)
    ln_stats(k, "v8", "v10", "v12", "v13", None, None)
    ln_stats(k, "v9", "v11", "v14", "v15", None, None)
    k("s_waitcnt lgkmcnt(0)")
    k("v_lshlrev_b32 v6, 4, v1")
    k("s_lshl_b32 s34, s31, 2")
    k("s_lshl_b32 s6, s4, 1")
    k("s_add_u32 s34, s34, s6")
    k("s_mul_i32 s34, s34, 112")
    k("s_lshl_b32 s6, s32, 3")
    k("s_add_u32 s34, s34, s6")
    k("s_lshl_b32 s6, s5, 2")
    k("s_add_u32 s34, s34, s6")
    k("s_lshl_b32 s34, s34, 10")
    OUT = 208
    for i in range(2):
        rstd = "v12" if i == 0 else "v14"
        mr = "v13" if i == 0 else "v15"
        for j in range(2):
            a0 = g.ACC + (i * 2 + j) * 16
            for hd in range(2):
                for qq in range(2):
                    q = 2 * hd + qq
                    for pr in range(2):
                        ra = a0 + 4 * q + 2 * pr
                        ca = CSR + (j * 4 + q) * 4 + 2 * pr
                        k("v_mul_f32 v24, %s, %s", v(ra), rstd)
                        k("v_mul_f32 v25, %s, %s", v(ra + 1), rstd)
                        k("v_fma_f32 v24, -%s, %s, v24", mr, v(ca))
                        k("v_fma_f32 v25, -%s, %s, v25", mr, v(ca + 1))
                        round_pair(k, "v24", "v25", "v26")
                        silu_pair(k, "v24", "v25", v(OUT + qq * 2 + pr), "v26", "v27")
                k("s_add_u32 s7, s34, %d", (i * 112 + 2 * j + hd) * 1024)
                k("buffer_store_dwordx4 %s, v6, s[16:19], s7 offen", v(OUT, 4))
                k("s_nop 1")
    k.label("P3_END")
    k("s_endpgm")
    return k.text()
```

```python
from asmlib import *
from common import *

NWG4 = 256
LDS4 = 65536
DEPTH = 8
def desc():
    return ("p4_kernel", NWG4, 256, LDS4, p4_kernel(), 320)
def a(i, n=1):
    return "a%d" % i if n == 1 else "a[%d:%d]" % (i, i + n - 1)
FR = 32
HR = 16
def p4_kernel():
    k = K("p4")
    k("s_cmp_ge_u32 s2, %d", NWG4)
    k("s_cbranch_scc1 P4_END")
    k("s_load_dwordx2 s[40:41], s[0:1], 48")
    k("s_load_dwordx2 s[50:51], s[0:1], 64")
    k("v_and_b32 v1, 63, v0")
    k("v_lshrrev_b32 v2, 6, v0")
    k("s_nop 0")
    k("v_readfirstlane_b32 s3, v2")
    k("s_and_b32 s6, s2, 7")
    k("s_lshr_b32 s7, s2, 3")
    k("s_and_b32 s4, s6, 3")
    k("s_lshl_b32 s4, s4, 3")
    k("s_and_b32 s5, s7, 7")
    k("s_add_u32 s4, s4, s5")
    k("s_lshr_b32 s5, s6, 2")
    k("s_lshl_b32 s5, s5, 2")
    k("s_lshr_b32 s7, s7, 3")
    k("s_add_u32 s5, s5, s7")
    k("v_lshlrev_b32 v2, 4, v1")
    k("v_and_b32 v3, 31, v1")
    k("v_lshrrev_b32 v5, 5, v1")
    k("s_lshl_b32 s6, s4, 6")
    k("s_lshr_b32 s7, s3, 1")
    k("s_lshl_b32 s7, s7, 5")
    k("s_add_u32 s6, s6, s7")
    k("v_add_u32 v6, s6, v3")
    k("v_lshlrev_b32 v6, 10, v6")
    k("v_lshl_add_u32 v6, v5, 3, v6")
    k("s_lshl_b32 s7, s5, 7")
    k("s_and_b32 s8, s3, 1")
    k("s_lshl_b32 s8, s8, 6")
    k("s_add_u32 s7, s7, s8")
    k("v_add_u32 v6, s7, v6")
    k("s_waitcnt lgkmcnt(0)")
    srd(k, 8, 50, 51, 64 * 112 * 1024, WS_H1)
    srd(k, 12, 50, 51, 112 * 16 * 1024, WS_W2P)
    srd(k, 20, 50, 51, 0x200000, WS_H)
    srd(k, 24, 40, 41, 0x200000)
    k.c("bases: A: ((2rbk)*112 + 28w)*1024 (+112K for i=1) ; B: ((28w)*16 + 2ctile)*1024 (+16K per kstep)")
    k("s_mul_i32 s32, s4, 224")
    k("s_mul_i32 s6, s3, 28")
    k("s_add_u32 s32, s32, s6")
    k("s_lshl_b32 s32, s32, 10")
    k("s_lshl_b32 s33, s6, 4")
    k("s_lshl_b32 s7, s5, 1")
    k("s_add_u32 s33, s33, s7")
    k("s_lshl_b32 s33, s33, 10")
    for q in range(4):
        k("buffer_load_dwordx2 %s, v6, s[20:23], 0 offen offset:%d", v(HR + 2 * q, 2), 16 * q)
    def issue(m):
        sl = FR + (m % DEPTH) * 16
        k("s_add_u32 s7, s32, %d", m * 1024)
        k("buffer_load_dwordx4 %s, v2, s[8:11], s7 offen", v(sl, 4))
        k("s_add_u32 s7, s32, %d", m * 1024 + 112 * 1024)
        k("buffer_load_dwordx4 %s, v2, s[8:11], s7 offen", v(sl + 4, 4))
        k("s_add_u32 s7, s33, %d", m * 16384)
        k("buffer_load_dwordx4 %s, v2, s[12:15], s7 offen", v(sl + 8, 4))
        k("buffer_load_dwordx4 %s, v2, s[12:15], s7 offen offset:1024", v(sl + 12, 4))
    for m in range(DEPTH):
        issue(m)
    NK = 28
    for m in range(NK):
        sl = FR + (m % DEPTH) * 16
        later = min(NK, m + DEPTH) - (m + 1)
        k("s_waitcnt vmcnt(%d)", 4 * later)
        for i in range(2):
            for j in range(2):
                d = a((i * 2 + j) * 16, 16)
                k("v_mfma_f32_32x32x16_bf16 %s, %s, %s, %s", d, v(sl + 8 + 4 * j, 4), v(sl + 4 * i, 4), "0" if m == 0 else d)
        if m + DEPTH < NK:
            issue(m + DEPTH)
    k("s_lshl_b32 s6, s3, 12")
    k("v_add_u32 v3, s6, v2")
    k("s_nop 15")
    for o in range(4):
        for q in range(4):
            k("ds_write_b128 v3, %s offset:%d", a(o * 16 + q * 4, 4), o * 16384 + q * 1024)
    k("s_waitcnt lgkmcnt(0)")
    k("s_barrier")
    k("s_lshl_b32 s6, s3, 14")
    k("v_add_u32 v3, s6, v2")
    for src in range(4):
        for q in range(4):
            k("ds_read_b128 %s, v3 offset:%d", v(32 + src * 16 + q * 4, 4), src * 4096 + q * 1024)
    k("s_waitcnt lgkmcnt(0)")
    for r in range(16):
        k("v_add_f32 %s, %s, %s", v(32 + r), v(32 + r), v(48 + r))
        k("v_add_f32 %s, %s, %s", v(64 + r), v(64 + r), v(80 + r))
        k("v_add_f32 %s, %s, %s", v(32 + r), v(32 + r), v(64 + r))
    for q in range(4):
        for p in range(2):
            r = 32 + 4 * q + 2 * p
            xr = HR + 2 * q + p
            k("v_cvt_pk_bf16_f32 v13, %s, %s", v(r), v(r + 1))
            k("v_lshlrev_b32 v14, 16, v13")
            k("v_and_b32 v15, 0xffff0000, v13")
            k("v_lshlrev_b32 v12, 16, %s", v(xr))
            k("v_and_b32 v11, 0xffff0000, %s", v(xr))
            k("v_add_f32 v14, v14, v12")
            k("v_add_f32 v15, v15, v11")
            k("v_cvt_pk_bf16_f32 %s, v14, v15", v(96 + 2 * q + p))
        k("buffer_store_dwordx2 %s, v6, s[24:27], 0 offen offset:%d", v(96 + 2 * q, 2), 16 * q)
    k.label("P4_END")
    k("s_endpgm")
    return k.text()
```

```python
import sys
from asmlib import *
from common import *
import p1
from core1 import LDS_TOTAL1
NAME = "sequential_preLN__linear_attn_block__dense_activation_silu__prompt"
HEAD = open("cdna_kernels/%s.s.ref" % NAME).read().split("; Override launch geometry")[0]
def build(kernels):
    out = HEAD
    for (lab, grid, blk, lds, text, nv) in kernels:
        out += "; @launch kernel=%s grid=(%d,1,1) block=(%d,1,1) lds=%d\n" % (lab, grid, blk, lds)
    out += '.amdgcn_target "amdgcn-amd-amdhsa--gfx950"\n.text\n'
    for (lab, grid, blk, lds, text, nv) in kernels:
        out += kernel_header(lab) + text
    out += '.section .rodata,"a"\n'
    for (lab, grid, blk, lds, text, nv) in kernels:
        out += ".p2align 6\n" + kernel_desc(lab, nv, 102, 72)
    return out
if __name__ == "__main__":
    ks = [("p1_kernel", p1.NWG1, 256, LDS_TOTAL1, p1.p1_kernel(), 256)]
    try:
        import p2; ks.append(p2.desc())
        import p3; ks.append(p3.desc())
        import p4; ks.append(p4.desc())
    except ImportError as e:
        print("missing", e)
    txt = build(ks)
    dst = sys.argv[1] if len(sys.argv) > 1 else "cur.s"
    open(dst, "w").write(txt)
    print("wrote", dst, len(txt))
```

```python
import re
class K:
    STAMPS = False
    kid = 0
    def __init__(self, prefix="k"):
        self.L = []
        self.lbl = 0
        self.prefix = prefix
    def __call__(self, s, *a):
        if a: s = s % a
        if s.startswith("buffer_"):
            m = re.search(r"offset:(\d+)", s)
            assert not m or int(m.group(1)) < 4096, "MUBUF offset too large: " + s
        if s.startswith("ds_"):
            m = re.search(r"offset:(\d+)", s)
            assert not m or int(m.group(1)) < 65536, "DS offset too large: " + s
        self.L.append("  " + s)
    def c(self, s):
        self.L.append("  ; " + s)
    def label(self, name):
        self.L.append(name + ":")
    def new_label(self, p="L"):
        self.lbl += 1
        return "%s_%s_%d" % (self.prefix, p, self.lbl)
    def stamp(self, n):
        if K.STAMPS:
            self("s_memtime s[%d:%d]", 60 + 2 * n, 61 + 2 * n)
            if n == 0: self("s_memrealtime s[72:73]")
    def end(self):
        if K.STAMPS:
            self("s_waitcnt vmcnt(0)")
            self.stamp(5)
            self("s_memrealtime s[74:75]")
            self("s_waitcnt lgkmcnt(0)")
            L = self.new_label("Lst")
            self("s_cmp_eq_u32 s3, 0")
            self("s_cbranch_scc0 %s", L)
            self("s_mov_b64 exec, 1")
            self("s_load_dwordx2 s[76:77], s[0:1], 64")
            self("s_waitcnt lgkmcnt(0)")
            self("s_add_u32 s76, s76, 0x%x", 0x1000000 + self.kid * 0x10000)
            self("s_addc_u32 s77, s77, 0")
            self("s_lshl_b32 s78, s2, 6")
            self("v_mov_b32 v2, s78")
            for i in range(8):
                self("v_mov_b32 v4, s%d", 60 + 2 * i)
                self("v_mov_b32 v5, s%d", 61 + 2 * i)
                self("global_store_dwordx2 v2, v[4:5], s[76:77] offset:%d", 8 * i)
            self.label(L)
        self("s_endpgm")
    def text(self):
        return "\n".join(self.L) + "\n"

def v(i, n=1):
    return "v%d" % i if n == 1 else "v[%d:%d]" % (i, i + n - 1)
def s(i, n=1):
    return "s%d" % i if n == 1 else "s[%d:%d]" % (i, i + n - 1)

def kernel_header(name):
    return (".globl %s\n.p2align 8\n.type %s,@function\n%s:\n" % (name, name, name))

def kernel_desc(name, vgpr, sgpr=102, kernarg=72):
    vg = max(8, (vgpr + 7) // 8 * 8)
    return ('.amdhsa_kernel %s\n  .amdhsa_next_free_vgpr %d\n  .amdhsa_next_free_sgpr %d\n  .amdhsa_accum_offset %d\n'
            '  .amdhsa_group_segment_fixed_size 0\n  .amdhsa_kernarg_size %d\n  .amdhsa_user_sgpr_count 2\n'
            '  .amdhsa_user_sgpr_kernarg_segment_ptr 1\n  .amdhsa_system_sgpr_workgroup_id_x 1\n.end_amdhsa_kernel\n'
            % (name, vgpr, sgpr, min(256, (vgpr + 3) // 4 * 4), kernarg))
```

```python
from asmlib import *
from common import *
import os
ABL = os.environ.get('ABL', '')

LDA = 1024
LDS_STAGE = 32768
STG0 = 4096
O_ROWSUM = 0
O_ROWSQ = 512
O_COLSUM = 1024
O_RST = 1536
O_MR = 2048
LDS_TOTAL1 = STG0 + 4 * LDS_STAGE

class G1:
    SEL = 24
    ACC = 32
    FA = 96
    FB = 120
    AADDR = 144
    BADDR = 160
    GRAM = 164
    SUMR = 180
    SUMC = 184
    KEEP = 188
    VOA_E = 32; VOA_O = 33; VOB = 34
NV1 = 224

def emit_dma_offsets(k, ldb):
    g = G1
    k("v_lshrrev_b32 v2, 3, v1")
    k("v_lshlrev_b32 v2, 10, v2")
    k("v_and_b32 v3, 7, v1")
    k("v_lshrrev_b32 v4, 4, v1")
    k("v_xor_b32 v5, v3, v4")
    k("v_lshl_add_u32 %s, v5, 4, v2", v(g.VOA_E))
    k("v_xor_b32 v5, 4, v5")
    k("v_lshl_add_u32 %s, v5, 4, v2", v(g.VOA_O))
    k("v_and_b32 v3, 15, v1")
    k("v_lshlrev_b32 v5, 2, v4")
    k("v_xor_b32 v10, v3, v5")
    k("s_mov_b32 s6, %d", ldb)
    k("v_mul_lo_u32 v11, v4, s6")

def emit_frag_addrs(k):
    g = G1
    k("v_and_b32 v2, 31, v1")
    k("v_lshrrev_b32 v3, 5, v1")
    k("v_lshrrev_b32 v4, 1, v2")
    k("v_and_b32 v4, 7, v4")
    k("v_xor_b32 v4, v4, v3")
    k("v_lshlrev_b32 v5, 7, v2")
    k("s_lshl_b32 s6, s4, 13")
    k("s_add_u32 s6, s6, %d", STG0)
    k("v_add_u32 v5, s6, v5")
    for il in range(2):
        k("s_xor_b32 s6, s5, %d", il)
        k("s_lshl_b32 s6, s6, 12")
        for t in range(4):
            k("v_xor_b32 v6, %d, v4", 2 * t)
            k("v_lshl_add_u32 v6, v6, 4, v5")
            k("v_add_u32 %s, s6, v6", v(g.AADDR + il * 8 + t))
            k("v_add_u32 %s, 0x10000, %s", v(g.AADDR + il * 8 + 4 + t), v(g.AADDR + il * 8 + t))
    k("v_lshrrev_b32 v2, 4, v1")
    k("v_and_b32 v3, 15, v1")
    k("v_lshrrev_b32 v4, 5, v1")
    k("v_lshlrev_b32 v4, 3, v4")
    k("v_lshrrev_b32 v5, 2, v3")
    k("v_add_u32 v4, v4, v5")
    k("v_lshlrev_b32 v4, 8, v4")
    k("v_and_b32 v6, 1, v2")
    k("v_lshlrev_b32 v6, 1, v6")
    k("v_bfe_u32 v7, v3, 1, 1")
    k("v_add_u32 v6, v6, v7")
    k("s_lshl_b32 s6, s5, 3")
    k("v_add_u32 v6, s6, v6")
    k("v_lshlrev_b32 v7, 2, v5")
    k("v_and_b32 v8, 1, v3")
    k("v_lshlrev_b32 v8, 3, v8")
    k("v_add_u32 v4, %d, v4", STG0)
    for tn in range(2):
        k("s_xor_b32 s6, s4, %d", tn)
        k("s_lshl_b32 s6, s6, 2")
        k("v_add_u32 v9, s6, v6")
        k("v_xor_b32 v9, v9, v7")
        k("v_lshlrev_b32 v9, 4, v9")
        k("v_add3_u32 %s, v9, v4, v8", v(g.BADDR + tn))
        k("v_add_u32 %s, 0x10000, %s", v(g.BADDR + 2 + tn), v(g.BADDR + tn))
    k.c("selector: lane (m=l&15, grp=l>>4): ones iff m == (grp&1)")
    k("v_and_b32 v2, 15, v1")
    k("v_bfe_u32 v3, v1, 4, 1")
    k("v_cmp_eq_u32 vcc, v2, v3")
    k("v_mov_b32 v4, 0x3f803f80")
    k("s_nop 0")
    for r in range(4):
        k("v_cndmask_b32 %s, 0, v4, vcc", v(g.SEL + r))

def dma_stage(k, st, ldb, sA_base, sB_base, sW4096):
    g = G1
    b = st % 4
    for qq in range(4):
        k("s_add_u32 m0, %s, %d", s(sW4096), b * LDS_STAGE + qq * 1024)
        k("s_add_u32 s7, %s, %d", s(sA_base), qq * 8 * LDA + st * 128)
        k("buffer_load_dwordx4 %s, s[8:11], s7 offen lds", v(g.VOA_E if qq % 2 == 0 else g.VOA_O))
    for qq in range(4):
        k("s_add_u32 m0, %s, %d", s(sW4096), b * LDS_STAGE + 16384 + qq * 1024)
        k("s_add_u32 s7, %s, %d", s(sB_base), (st * 64 + qq * 4) * ldb)
        k("buffer_load_dwordx4 %s, s[12:15], s7 offen lds", v(g.VOB))

def l2_prefetch(k, ldb, sA_base, sB_base, line1_off):
    k("v_and_b32 v2, 31, v1")
    k("v_lshlrev_b32 v2, 10, v2")
    k("v_lshrrev_b32 v3, 5, v1")
    k("v_lshl_add_u32 v2, v3, 7, v2")
    k("s_add_u32 s7, %s, 512", s(sA_base))
    k("buffer_load_dword v40, v2, s[8:11], s7 offen")
    k("buffer_load_dword v41, v2, s[8:11], s7 offen offset:256")
    k("v_lshrrev_b32 v3, 5, v1")
    k("v_lshlrev_b32 v3, 6, v3")
    k("v_bfe_u32 v4, v1, 1, 4")
    k("v_add_u32 v3, v3, v4")
    k("s_mov_b32 s6, %d", ldb)
    k("v_mul_lo_u32 v3, v3, s6")
    k("v_and_b32 v4, 1, v1")
    k("v_mul_u32_u24 v4, %d, v4", line1_off)
    k("v_add_u32 v3, v3, v4")
    k("s_add_u32 s7, %s, %d", s(sB_base), 256 * ldb)
    k("buffer_load_dword v42, v3, s[12:15], s7 offen")
    k("s_add_u32 s7, %s, %d", s(sB_base), 384 * ldb)
    k("buffer_load_dword v43, v3, s[12:15], s7 offen")
    return 4

def loader_loop(k, ldb, sA_base, sB_base, sW4096, hook_first=None, hook_st0=None, nst=8, line1_off=128):
    for st in range(2):
        dma_stage(k, st, ldb, sA_base, sB_base, sW4096)
    npf = l2_prefetch(k, ldb, sA_base, sB_base, line1_off) if 'pf' in ABL else 0
    k("s_waitcnt vmcnt(%d)", 8 + npf)
    k("s_barrier")
    if hook_first: hook_first(k)
    for st in range(2, 4):
        dma_stage(k, st, ldb, sA_base, sB_base, sW4096)
    for st in range(1, nst):
        if st >= 2 and st + 2 < nst:
            dma_stage(k, st + 2, ldb, sA_base, sB_base, sW4096)
        issued = min(nst - 1, max(3, st + 2))
        k("s_waitcnt vmcnt(%d)", 8 * (issued - st) + (npf if st == 1 else 0))
        if st == 2 and hook_st0: hook_st0(k)
        k("s_barrier")

def frag_reads(st, t, fb):
    g = G1
    b = st % 4
    hi = 1 if b >= 2 else 0
    bo = (b % 2) * LDS_STAGE
    r = []
    r.append("ds_read_b128 %s, %s offset:%d" % (v(g.FA + fb * 8 + 0, 4), v(g.AADDR + hi * 4 + t), bo))
    for u in range(2):
        r.append("ds_read_b64_tr_b16 %s, %s offset:%d" % (v(g.FB + fb * 8 + 0 + 2 * u, 2), v(g.BADDR + hi * 2 + 0), bo + 16384 + (16 * t + 4 * u) * 256))
    for u in range(2):
        r.append("ds_read_b64_tr_b16 %s, %s offset:%d" % (v(g.FB + fb * 8 + 4 + 2 * u, 2), v(g.BADDR + hi * 2 + 1), bo + 16384 + (16 * t + 4 * u) * 256))
    r.append("ds_read_b128 %s, %s offset:%d" % (v(g.FA + fb * 8 + 4, 4), v(g.AADDR + 8 + hi * 4 + t), bo))
    return r

def mfma(i, j, fb, transposed, first):
    g = G1
    a = v(g.FA + fb * 8 + 4 * i, 4)
    b = v(g.FB + fb * 8 + 4 * j, 4)
    d = v(g.ACC + (i * 2 + j) * 16, 16)
    c = "0" if first else d
    if transposed:
        return "v_mfma_f32_32x32x16_bf16 %s, %s, %s, %s" % (d, b, a, c)
    return "v_mfma_f32_32x32x16_bf16 %s, %s, %s, %s" % (d, a, b, c)

def compute_loop(k, transposed, rowstats, colstats, nst=8):
    g = G1
    NG = 4 * nst
    emit_frag_addrs(k)
    k("s_barrier")
    k.stamp(1)
    for r in frag_reads(0, 0, 0): k(r)
    for r in frag_reads(0, 1, 1): k(r)
    for gt in range(NG):
        st, t = divmod(gt, 4)
        cur = gt % 3
        first = (gt == 0)
        g2 = gt + 2
        rd = []
        if t == 2 and st < nst - 1:
            k("s_waitcnt lgkmcnt(0)")
            k("s_barrier")
        else:
            k("s_waitcnt lgkmcnt(%d)", 6 if gt + 1 < NG else 0)
        if g2 < NG:
            rd = frag_reads(g2 // 4, g2 % 4, g2 % 3)
        extra = []
        fa0 = v(g.FA + cur * 8, 4); fb0 = v(g.FB + cur * 8, 4)
        if rowstats:
            extra.append("v_mfma_f32_32x32x16_bf16 %s, %s, %s, %s" % (v(g.GRAM, 16), fa0, fa0, "0" if first else v(g.GRAM, 16)))
            extra.append("v_mfma_f32_16x16x32_bf16 %s, %s, %s, %s" % (v(g.SUMR, 4), v(g.SEL, 4), fa0, "0" if first else v(g.SUMR, 4)))
        if colstats:
            extra.append("v_mfma_f32_16x16x32_bf16 %s, %s, %s, %s" % (v(g.SUMC, 4), v(g.SEL, 4), fb0, "0" if first else v(g.SUMC, 4)))
        order = [(0, 0), (0, 1), (1, 0), (1, 1)]
        for n, (i, j) in enumerate(order):
            k(mfma(i, j, cur, transposed, first))
            for r in rd[2 * n:2 * n + 2]:
                k(r)
            if n < len(extra): k(extra[n])

def stats_to_lds(k, rowstats, colstats):
    g = G1
    k.stamp(2)
    k("s_nop 15")
    k("s_nop 7")
    if rowstats:
        k("v_and_b32 v2, 31, v1")
        k("v_and_b32 v3, 3, v2")
        k("v_lshrrev_b32 v4, 3, v2")
        k("v_lshl_add_u32 v3, v4, 2, v3")
        k("v_mov_b32 v8, 0")
        for r in range(16):
            k("v_cmp_eq_u32 vcc, %d, v3", r)
            k("s_nop 1")
            k("v_cndmask_b32 v8, v8, %s, vcc", v(g.GRAM + r))
        k("v_bfe_u32 v4, v2, 2, 1")
        k("v_lshrrev_b32 v5, 5, v1")
        k("v_cmp_eq_u32 vcc, v4, v5")
        k("s_lshl_b32 s6, s4, 8")
        k("s_lshl_b32 s7, s5, 7")
        k("s_add_u32 s6, s6, s7")
        k("v_lshlrev_b32 v6, 2, v2")
        k("v_add_u32 v6, s6, v6")
        k("s_and_saveexec_b64 s[58:59], vcc")
        k("ds_write_b32 v6, v8 offset:%d", O_ROWSQ)
        k("s_mov_b64 exec, s[58:59]")
        k("v_lshlrev_b32 v6, 2, v1")
        k("v_add_u32 v6, s6, v6")
        k("s_mov_b64 exec, 0xffff")
        k("ds_write_b32 v6, %s offset:%d", v(g.SUMR), O_ROWSUM)
        k("ds_write_b32 v6, %s offset:%d", v(g.SUMR + 1), O_ROWSUM + 64)
        k("s_mov_b64 exec, -1")
    if colstats:
        k("s_lshl_b32 s6, s5, 8")
        k("s_lshl_b32 s7, s4, 7")
        k("s_add_u32 s6, s6, s7")
        k("v_lshlrev_b32 v6, 2, v1")
        k("v_add_u32 v6, s6, v6")
        k("s_mov_b64 exec, 0xffff")
        k("ds_write_b32 v6, %s offset:%d", v(g.SUMC), O_COLSUM)
        k("ds_write_b32 v6, %s offset:%d", v(g.SUMC + 1), O_COLSUM + 64)
        k("s_mov_b64 exec, -1")
    k("s_waitcnt lgkmcnt(0)")
    k("s_barrier")
    k.stamp(3)
```

```python
from asmlib import *
from common import *
from core1 import G1, O_ROWSUM, O_ROWSQ, O_COLSUM

CSR = 96
OUT = 128
TT = 132
EE = 140
UU = 148
S_LOG2E = 52
S_NLOG2E = 54
S_1EM6 = 56

def consts(k):
    k("s_mov_b32 s%d, 0x3fb8aa3b", S_LOG2E); k("s_mov_b32 s%d, 0x3fb8aa3b", S_LOG2E + 1)
    k("s_mov_b32 s%d, 0xbfb8aa3b", S_NLOG2E); k("s_mov_b32 s%d, 0xbfb8aa3b", S_NLOG2E + 1)
    k("s_mov_b32 s%d, 0x358637bd", S_1EM6); k("s_mov_b32 s%d, 0x358637bd", S_1EM6 + 1)

def load_colsum(k):
    k("v_lshrrev_b32 v3, 5, v1")
    k("v_lshlrev_b32 v5, 4, v3")
    k("s_lshl_b32 s6, s5, 8")
    k("v_add_u32 v5, s6, v5")
    for jl in range(2):
        k("s_xor_b32 s6, s4, %d", jl)
        k("s_lshl_b32 s6, s6, 7")
        k("v_add_u32 v6, s6, v5")
        for q in range(4):
            k("ds_read_b128 %s, v6 offset:%d", v(CSR + (jl * 4 + q) * 4, 4), O_COLSUM + q * 32)

def act_batch(k, act, acc0, cs0, rstd, mr, round_in=True, normal=False, out=None):
    P = range(4)
    if out is None: out = OUT
    T = lambda p: v(TT + 2 * p, 2)
    E = lambda p: v(EE + 2 * p, 2)
    if not normal:
        for p in P: k("v_pk_mul_f32 %s, %s, %s op_sel_hi:[1,0]", T(p), v(acc0 + 2 * p, 2), v(rstd, 2))
        for p in P: k("v_pk_fma_f32 %s, %s, %s, %s op_sel_hi:[1,0,1] neg_lo:[0,1,0] neg_hi:[0,1,0]", T(p), v(cs0 + 2 * p, 2), v(mr, 2), T(p))
    else:
        for p in P: k("v_pk_mul_f32 %s, %s, %s", T(p), v(acc0 + 2 * p, 2), v(rstd + 2 * p, 2))
        for p in P: k("v_pk_fma_f32 %s, %s, %s, %s op_sel_hi:[1,0,1] neg_lo:[0,1,0] neg_hi:[0,1,0]", T(p), v(mr + 2 * p, 2), v(cs0, 2), T(p))
    if round_in and act != "none":
        for p in P: k("v_cvt_pk_bf16_f32 %s, %s, %s", v(UU + p), v(TT + 2 * p), v(TT + 2 * p + 1))
        for p in P:
            k("v_lshlrev_b32 %s, 16, %s", v(TT + 2 * p), v(UU + p))
            k("v_and_b32 %s, 0xffff0000, %s", v(TT + 2 * p + 1), v(UU + p))
    if act == "phi":
        for p in P:
            k("v_min_f32 %s, 0, %s", v(EE + 2 * p), v(TT + 2 * p))
            k("v_min_f32 %s, 0, %s", v(EE + 2 * p + 1), v(TT + 2 * p + 1))
        for p in P: k("v_pk_add_f32 %s, %s, %s neg_lo:[0,1] neg_hi:[0,1]", T(p), T(p), E(p))
        for p in P: k("v_pk_mul_f32 %s, %s, s[%d:%d]", E(p), E(p), S_LOG2E, S_LOG2E + 1)
        for p in P:
            k("v_exp_f32 %s, %s", v(EE + 2 * p), v(EE + 2 * p))
            k("v_exp_f32 %s, %s", v(EE + 2 * p + 1), v(EE + 2 * p + 1))
        for p in P: k("v_pk_add_f32 %s, %s, s[%d:%d]", T(p), T(p), S_1EM6, S_1EM6 + 1)
        for p in P: k("v_pk_add_f32 %s, %s, %s", T(p), T(p), E(p))
    elif act == "silu":
        for p in P: k("v_pk_mul_f32 %s, %s, s[%d:%d]", E(p), T(p), S_NLOG2E, S_NLOG2E + 1)
        for p in P:
            k("v_exp_f32 %s, %s", v(EE + 2 * p), v(EE + 2 * p))
            k("v_exp_f32 %s, %s", v(EE + 2 * p + 1), v(EE + 2 * p + 1))
        for p in P: k("v_pk_add_f32 %s, %s, 1.0 op_sel_hi:[1,0]", E(p), E(p))
        for p in P:
            k("v_rcp_f32 %s, %s", v(EE + 2 * p), v(EE + 2 * p))
            k("v_rcp_f32 %s, %s", v(EE + 2 * p + 1), v(EE + 2 * p + 1))
        k("s_nop 0")
        for p in P: k("v_pk_mul_f32 %s, %s, %s", T(p), T(p), E(p))
    for p in P: k("v_cvt_pk_bf16_f32 %s, %s, %s", v(out + p), v(TT + 2 * p), v(TT + 2 * p + 1))

def epilogue_T(k, act, rowmul, s_base, srd_out, ils=(0, 1)):
    g = G1
    k("v_lshlrev_b32 v6, 4, v1")
    for il in ils:
        rstd = 8 + 4 * il; mr = 10 + 4 * il
        k("s_xor_b32 s35, s5, %d", il)
        k("s_mul_i32 s35, s35, %d", rowmul * 1024)
        k("s_add_u32 s35, s35, s%d", s_base)
        for jl in range(2):
            k("s_xor_b32 s36, s4, %d", jl)
            k("s_lshl_b32 s36, s36, 11")
            k("s_add_u32 s36, s36, s35")
            a0 = g.ACC + (il * 2 + jl) * 16
            for hd in range(2):
                act_batch(k, act, a0 + 8 * hd, CSR + jl * 16 + 8 * hd, rstd, mr)
                k("s_add_u32 s7, s36, %d", hd * 1024)
                k("buffer_store_dwordx4 %s, v6, s[%d:%d], s7 offen" + STSUF, v(OUT, 4), srd_out, srd_out + 3)
```

```python
from asmlib import *
from common import *
import core1
import epi
from core1 import G1, O_ROWSUM, O_ROWSQ, O_COLSUM, O_RST, O_MR, LDS_TOTAL1

NWG1 = 228
LDB1 = 3072

def p1_kernel():
    g = G1
    k = K("p1")
    k.kid = 0
    k("s_cmp_ge_u32 s2, %d", NWG1)
    k("s_cbranch_scc1 P1_END")
    k.stamp(0)
    k("s_load_dwordx4 s[40:43], s[0:1], 0")
    k("s_load_dwordx2 s[44:45], s[0:1], 16")
    k("s_load_dwordx2 s[46:47], s[0:1], 40")
    k("s_load_dwordx4 s[48:51], s[0:1], 56")
    k("v_and_b32 v1, 63, v0")
    k("v_lshrrev_b32 v2, 6, v0")
    k("s_nop 0")
    k("v_readfirstlane_b32 s3, v2")
    k("s_and_b32 s37, s3, 3")
    k("s_lshr_b32 s4, s37, 1")
    k("s_and_b32 s5, s37, 1")
    k("s_cmp_ge_u32 s2, 192")
    k("s_cbranch_scc1 P1_REPACK")
    k.c("tile mapping (XCD-aware): x=wg&7,i=wg>>3 ; rb=(x&3)*4+(i&3) ; ct=(x>>2)*6+(i>>2)")
    k("s_and_b32 s6, s2, 7")
    k("s_lshr_b32 s7, s2, 3")
    k("s_and_b32 s31, s6, 3")
    k("s_lshl_b32 s31, s31, 2")
    k("s_and_b32 s32, s7, 3")
    k("s_add_u32 s31, s31, s32")
    k("s_lshr_b32 s32, s6, 2")
    k("s_mul_i32 s32, s32, 6")
    k("s_lshr_b32 s7, s7, 2")
    k("s_add_u32 s32, s32, s7")
    k("s_sub_u32 s34, s32, 4")
    epi.consts(k)
    k("s_waitcnt lgkmcnt(0)")
    srd(k, 8, 40, 41, 2048 * 1024)
    srd(k, 12, 42, 43, 512 * 3072)
    srd(k, 16, 50, 51, 0x200000, WS_PQ)
    srd(k, 20, 50, 51, 32 * 1088, WS_KV)
    srd(k, 24, 48, 49, 256)
    k("s_cmp_ge_u32 s3, 4")
    k("s_cbranch_scc1 P1_LOADER")
    k("s_cmp_lt_u32 s32, 4")
    k("s_cbranch_scc0 P1_KV")
    core1.compute_loop(k, True, True, True)
    core1.stats_to_lds(k, True, True)
    k.c("Q epilogue (transposed: lane=row)")
    k("v_and_b32 v2, 31, v1")
    k("v_lshlrev_b32 v4, 2, v2")
    k("s_lshl_b32 s6, s4, 8")
    k("v_add_u32 v4, s6, v4")
    for il in range(2):
        k("s_xor_b32 s6, s5, %d", il)
        k("s_lshl_b32 s6, s6, 7")
        k("v_add_u32 v7, s6, v4")
        k("ds_read_b32 %s, v7 offset:%d", "v24" if il == 0 else "v26", O_ROWSUM)
        k("ds_read_b32 %s, v7 offset:%d", "v25" if il == 0 else "v27", O_ROWSQ)
    epi.load_colsum(k)
    k("s_waitcnt lgkmcnt(0)")
    ln_stats(k, "v24", "v25", "v8", "v10", None, None)
    ln_stats(k, "v26", "v27", "v12", "v14", None, None)
    k("s_lshl_b32 s34, s31, 2")
    k("s_lshl_b32 s6, s4, 1")
    k("s_add_u32 s34, s34, s6")
    k("s_lshl_b32 s34, s34, 5")
    k("s_lshl_b32 s6, s32, 3")
    k("s_add_u32 s34, s34, s6")
    k("s_lshl_b32 s6, s5, 2")
    k("s_add_u32 s34, s34, s6")
    k("s_lshl_b32 s34, s34, 10")
    epi.epilogue_T(k, "phi", 32, 34, 16)
    k.end()
    k.label("P1_LOADER")
    core1.emit_dma_offsets(k, LDB1)
    k("s_lshl_b32 s28, s31, 17")
    k("s_lshl_b32 s6, s37, 15")
    k("s_add_u32 s28, s28, s6")
    k("s_lshl_b32 s30, s37, 12")
    k("s_add_u32 s30, s30, %d", core1.STG0)
    k("s_mul_i32 s29, s37, %d", 16 * LDB1)
    k("s_mov_b32 s33, 1")
    k("v_mov_b32 v23, 1")
    k("s_cmp_lt_u32 s32, 4")
    k("s_cbranch_scc0 P1_LKV")
    k("v_lshl_add_u32 %s, v10, 4, v11", v(g.VOB))
    k("s_lshl_b32 s6, s32, 8")
    k("s_add_u32 s29, s29, s6")
    k("s_branch P1_LGO")
    k.label("P1_LKV")
    k("v_bfe_u32 v2, v10, 2, 1")
    k("v_lshlrev_b32 v2, 10, v2")
    k("v_lshrrev_b32 v3, 3, v10")
    k("v_lshl_add_u32 v2, v3, 6, v2")
    k("v_and_b32 v3, 3, v10")
    k("v_lshl_add_u32 v2, v3, 4, v2")
    k("v_add_u32 %s, v2, v11", v(g.VOB))
    k("s_lshl_b32 s6, s34, 7")
    k("s_add_u32 s29, s29, s6")
    k("s_add_u32 s29, s29, 1024")
    k.c("ticket (loader wave 4 only)")
    k("s_cmp_eq_u32 s3, 4")
    k("s_cbranch_scc0 P1_LGO")
    k("s_lshl_b32 s6, s34, 2")
    k("v_mov_b32 v3, s6")
    k("s_mov_b64 exec, 1")
    k("buffer_atomic_add v23, v3, s[24:27], 0 offen sc0")
    k("s_mov_b64 exec, -1")
    k.label("P1_LGO")
    def hook_first(k):
        k("v_readfirstlane_b32 s33, v23")
        k("s_nop 0")
        k("s_cmp_eq_u32 s33, 0")
        k("s_cbranch_scc0 P1_NOZERO")
        k.c("owner: zero the kv accumulators of this column tile (4352 bytes)")
        k("s_mul_i32 s6, s34, 4352")
        k("s_add_u32 s6, s6, 0x%x", WS_KV)
        k("s_add_u32 s60, s50, s6")
        k("s_addc_u32 s61, s51, 0")
        k("s_mov_b32 s62, 4352")
        k("s_mov_b32 s63, 0x20000")
        k("v_mov_b32 v28, 0"); k("v_mov_b32 v29, 0"); k("v_mov_b32 v30, 0"); k("v_mov_b32 v31, 0")
        k("v_lshlrev_b32 v2, 4, v1")
        for z in range(4):
            k("buffer_store_dwordx4 v[28:31], v2, s[60:63], 0 offen offset:%d sc1", z * 1024)
        k("v_add_u32 v2, 4096, v2")
        k("buffer_store_dwordx4 v[28:31], v2, s[60:63], 0 offen sc1")
        k.label("P1_NOZERO")
    def hook_flag(k):
        k("s_cmp_eq_u32 s33, 0")
        k("s_cbranch_scc0 P1_NOFLAG")
        k("s_lshl_b32 s6, s34, 2")
        k("s_add_u32 s6, s6, 32")
        k("v_mov_b32 v3, s6")
        k("v_mov_b32 v2, 1")
        k("s_mov_b64 exec, 1")
        k("buffer_store_dword v2, v3, s[24:27], 0 offen sc1")
        k("s_mov_b64 exec, -1")
        k.label("P1_NOFLAG")
    k("s_cmp_lt_u32 s32, 4")
    k("s_cbranch_scc0 P1_LLKV")
    core1.loader_loop(k, LDB1, 28, 29, 30, None, None, line1_off=128)
    k("s_endpgm")
    k.label("P1_LLKV")
    core1.loader_loop(k, LDB1, 28, 29, 30, hook_first, hook_flag, line1_off=1024)
    k("s_endpgm")
    k.label("P1_KV")
    core1.compute_loop(k, False, True, True)
    core1.stats_to_lds(k, True, True)
    k.c("KV epilogue (normal: lane=col)")
    k("s_lshl_b32 s6, s34, 2")
    k("s_add_u32 s6, s6, 32")
    k("v_mov_b32 v7, s6")
    k("buffer_load_dword v23, v7, s[24:27], 0 offen sc1")
    k("v_lshlrev_b32 v4, 2, v1")
    k("s_lshl_b32 s6, s4, 8")
    k("v_add_u32 v4, s6, v4")
    k("ds_read_b32 v8, v4 offset:%d", O_ROWSUM)
    k("ds_read_b32 v10, v4 offset:%d", O_ROWSQ)
    k("v_and_b32 v2, 31, v1")
    k("v_lshlrev_b32 v5, 2, v2")
    k("s_lshl_b32 s6, s5, 8")
    k("v_add_u32 v5, s6, v5")
    k("ds_read_b32 v28, v5 offset:%d", O_COLSUM)
    k("ds_read_b32 v30, v5 offset:%d", O_COLSUM + 128)
    k("s_cmp_eq_u32 s4, 0")
    k("s_cbranch_scc1 P1_NOSWAP")
    for i in range(2):
        for r in range(16):
            k("v_swap_b32 %s, %s", v(g.ACC + i * 32 + r), v(g.ACC + i * 32 + 16 + r))
    k.label("P1_NOSWAP")
    k("s_waitcnt lgkmcnt(0)")
    ln_stats(k, "v8", "v10", "v12", "v13", None, None)
    k("ds_write_b32 v4, v12 offset:%d", O_RST)
    k("ds_write_b32 v4, v13 offset:%d", O_MR)
    k("s_waitcnt lgkmcnt(0)")
    k("v_lshrrev_b32 v3, 5, v1")
    k("v_lshlrev_b32 v5, 4, v3")
    k("s_lshl_b32 s6, s4, 8")
    k("v_add_u32 v5, s6, v5")
    RST = 96; MRR = 112
    KP = g.KEEP; VP = g.KEEP + 16
    for il in range(2):
        k("s_xor_b32 s6, s5, %d", il)
        k("s_lshl_b32 s6, s6, 7")
        k("v_add_u32 v6, s6, v5")
        for q in range(4):
            k("ds_read_b128 %s, v6 offset:%d", v(RST + q * 4, 4), O_RST + 32 * q)
            k("ds_read_b128 %s, v6 offset:%d", v(MRR + q * 4, 4), O_MR + 32 * q)
        k("s_waitcnt lgkmcnt(0)")
        for j in range(2):
            a0 = g.ACC + (il * 2 + j) * 16
            for b in range(2):
                epi.act_batch(k, "phi" if j == 0 else "none", a0 + 8 * b, 28 if j == 0 else 30, RST + 8 * b, MRR + 8 * b, normal=True,
                              out=(KP if j == 0 else VP) + il * 8 + 4 * b)
    k("s_nop 1")
    DKV = 96; DZ = 112
    n = 0
    for i in range(2):
        for u in range(2):
            k("v_mfma_f32_32x32x16_bf16 %s, %s, %s, %s", v(DKV, 16), v(VP + i * 8 + 4 * u, 4), v(KP + i * 8 + 4 * u, 4), "0" if n == 0 else v(DKV, 16))
            n += 1
    for r in range(4):
        k("v_mov_b32 %s, 0x3f803f80", v(24 + r))
    k("s_nop 1")
    n = 0
    for i in range(2):
        for u in range(2):
            k("v_mfma_f32_32x32x16_bf16 %s, v[24:27], %s, %s", v(DZ, 16), v(KP + i * 8 + 4 * u, 4), "0" if n == 0 else v(DZ, 16))
            n += 1
    k("v_bfe_u32 v2, v1, 4, 1")
    k("s_lshl_b32 s6, s34, 2")
    k("s_lshl_b32 s7, s5, 1")
    k("s_add_u32 s6, s6, s7")
    k("v_add_u32 v2, s6, v2")
    k("s_movk_i32 s6, 1088")
    k("v_mul_lo_u32 v2, v2, s6")
    k("v_lshrrev_b32 v3, 5, v1")
    k("v_lshl_add_u32 v2, v3, 8, v2")
    k("v_and_b32 v3, 15, v1")
    k("v_lshl_add_u32 v2, v3, 2, v2")
    k("v_and_b32 v3, 16, v1")
    k("v_cmp_ne_u32 vcc, 0, v3")
    k.label("P1_POLL")
    k("s_waitcnt vmcnt(0)")
    k("v_readfirstlane_b32 s6, v23")
    k("s_cmp_eq_u32 s6, 1")
    k("s_cbranch_scc1 P1_POLLED")
    k("buffer_load_dword v23, v7, s[24:27], 0 offen sc1")
    k("s_branch P1_POLL")
    k.label("P1_POLLED")
    k("s_nop 7")
    for i8 in range(8):
        k("v_cndmask_b32 v24, %s, %s, vcc", v(DKV + i8), v(DKV + 8 + i8))
        k("buffer_atomic_add_f32 v24, v2, s[20:23], 0 offen offset:%d", ((i8 & 3) + 8 * (i8 >> 2)) * 64)
        k("s_nop 1")
    k("s_mov_b32 exec_hi, 0")
    k("buffer_atomic_add_f32 %s, v2, s[20:23], 0 offen offset:1024", v(DZ))
    k.end()
    k.label("P1_REPACK")
    k("s_cmp_ge_u32 s3, 4")
    k("s_cbranch_scc1 P1_END")
    k("s_sub_u32 s31, s2, 192")
    k("s_waitcnt lgkmcnt(0)")
    k("s_cmp_lt_u32 s31, 28")
    k("s_cbranch_scc0 P1_RP_WO")
    srd(k, 8, 46, 47, 1792 * 1024)
    srd(k, 16, 50, 51, 112 * 16 * 1024, WS_W2P)
    k("s_branch P1_RP_GO")
    k.label("P1_RP_WO")
    k("s_sub_u32 s31, s31, 28")
    srd(k, 8, 44, 45, 512 * 1024)
    srd(k, 16, 50, 51, 32 * 16 * 1024, WS_WOP)
    k.label("P1_RP_GO")
    k("v_lshlrev_b32 v2, 4, v1")
    k("s_lshl_b32 s6, s31, 16")
    k("s_lshl_b32 s7, s3, 14")
    k("s_add_u32 s6, s6, s7")
    for q in range(16):
        k("s_add_u32 m0, s7, %d", q * 1024)
        k("s_add_u32 s28, s6, %d", q * 1024)
        k("buffer_load_dwordx4 v2, s[8:11], s28 offen lds")
    k("v_lshrrev_b32 v3, 5, v1")
    k("v_lshlrev_b32 v3, 2, v3")
    k("v_bfe_u32 v4, v1, 2, 2")
    k("v_add_u32 v3, v3, v4")
    k("v_lshlrev_b32 v3, 10, v3")
    k("v_add_u32 v3, s7, v3")
    k("v_bfe_u32 v4, v1, 4, 1")
    k("v_lshl_add_u32 v3, v4, 5, v3")
    k("v_and_b32 v4, 3, v1")
    k("v_lshl_add_u32 v3, v4, 3, v3")
    k("s_lshl_b32 s6, s31, 2")
    k("s_add_u32 s6, s6, s3")
    k("s_lshl_b32 s6, s6, 14")
    k("s_waitcnt vmcnt(0)")
    for j in range(16):
        rr = 16 + (j % 4) * 4
        k("ds_read_b64_tr_b16 %s, v3 offset:%d", v(rr, 2), j * 64)
        k("ds_read_b64_tr_b16 %s, v3 offset:%d", v(rr + 2, 2), 8192 + j * 64)
        k("s_waitcnt lgkmcnt(0)")
        k("s_add_u32 s7, s6, %d", j * 1024)
        k("buffer_store_dwordx4 %s, v2, s[16:19], s7 offen", v(rr, 4))
    k.end()
    k.label("P1_END")
    k("s_endpgm")
    return k.text()
```

```python
from asmlib import *
from common import *

NWG2 = 256
LDS2 = 65536
def desc():
    return ("p2_kernel", NWG2, 256, LDS2, p2_kernel(), 320)

PQ = 32
WO = 96
KVR = 160
XR = 224
OT = 16
def a(i, n=1):
    return "a%d" % i if n == 1 else "a[%d:%d]" % (i, i + n - 1)

def p2_kernel():
    k = K("p2")
    k.kid = 1
    k("s_cmp_ge_u32 s2, %d", NWG2)
    k("s_cbranch_scc1 P2_END")
    k.stamp(0)
    k("s_load_dwordx2 s[40:41], s[0:1], 0")
    k("s_load_dwordx2 s[50:51], s[0:1], 64")
    k("v_and_b32 v1, 63, v0")
    k("v_lshrrev_b32 v2, 6, v0")
    k("s_nop 0")
    k("v_readfirstlane_b32 s3, v2")
    k("s_and_b32 s6, s2, 7")
    k("s_lshr_b32 s7, s2, 3")
    k("s_and_b32 s4, s6, 3")
    k("s_lshl_b32 s4, s4, 3")
    k("s_and_b32 s5, s7, 7")
    k("s_add_u32 s4, s4, s5")
    k("s_lshr_b32 s5, s6, 2")
    k("s_lshl_b32 s5, s5, 2")
    k("s_lshr_b32 s7, s7, 3")
    k("s_add_u32 s5, s5, s7")
    k("v_lshlrev_b32 v2, 4, v1")
    k.c("kv lane offset: (m<16 ? m*64 : 1024) + h'*16")
    k("v_and_b32 v3, 31, v1")
    k("v_lshlrev_b32 v4, 6, v3")
    k("v_mov_b32 v5, 1024")
    k("v_cmp_gt_u32 vcc, 16, v3")
    k("s_nop 1")
    k("v_cndmask_b32 v4, v5, v4, vcc")
    k("v_lshrrev_b32 v5, 5, v1")
    k("v_lshl_add_u32 v4, v5, 4, v4")
    k.c("x/h lane offset: (row)*1024 + (col)*2 with row = 64rbk+32(w>>1)+(l&31), col = 64ctile + 32(w&1) + 4h'")
    k("s_lshl_b32 s6, s4, 6")
    k("s_lshr_b32 s7, s3, 1")
    k("s_lshl_b32 s7, s7, 5")
    k("s_add_u32 s6, s6, s7")
    k("v_add_u32 v6, s6, v3")
    k("v_lshlrev_b32 v6, 10, v6")
    k("v_lshl_add_u32 v6, v5, 3, v6")
    k("s_lshl_b32 s7, s5, 7")
    k("s_and_b32 s8, s3, 1")
    k("s_lshl_b32 s8, s8, 6")
    k("s_add_u32 s7, s7, s8")
    k("v_add_u32 v6, s7, v6")
    k("s_waitcnt lgkmcnt(0)")
    srd(k, 8, 50, 51, 0x200000, WS_PQ)
    srd(k, 12, 50, 51, 32 * 16 * 1024, WS_WOP)
    srd(k, 16, 50, 51, 32 * 1088, WS_KV)
    srd(k, 20, 40, 41, 2048 * 1024)
    srd(k, 24, 50, 51, 0x200000, WS_H)
    srd(k, 28, 50, 51, 2048 * 16 * 8, WS_HST)
    k.c("scalar bases")
    k("s_lshl_b32 s32, s4, 1")
    k("s_lshl_b32 s32, s32, 5")
    k("s_lshl_b32 s6, s3, 3")
    k("s_add_u32 s32, s32, s6")
    k("s_lshl_b32 s32, s32, 10")
    k("s_lshl_b32 s33, s6, 4")
    k("s_lshl_b32 s7, s5, 1")
    k("s_add_u32 s33, s33, s7")
    k("s_lshl_b32 s33, s33, 10")
    k("s_mul_i32 s34, s6, 1088")
    k.c("ring of 5 head-slots: slot = KVR(8) PQ(8) WO(8)")
    NS = 5
    SL = lambda hh: 32 + (hh % NS) * 24
    def issue(hh):
        b = SL(hh)
        k("s_add_u32 s7, s34, %d", hh * 1088)
        k("buffer_load_dwordx4 %s, v4, s[16:19], s7 offen", v(b, 4))
        k("buffer_load_dwordx4 %s, v4, s[16:19], s7 offen offset:32", v(b + 4, 4))
        for i in range(2):
            k("s_add_u32 s7, s32, %d", i * 32768 + hh * 1024)
            k("buffer_load_dwordx4 %s, v2, s[8:11], s7 offen", v(b + 8 + 4 * i, 4))
        k("s_add_u32 s7, s33, %d", hh * 16384)
        for j in range(2):
            k("buffer_load_dwordx4 %s, v2, s[12:15], s7 offen offset:%d", v(b + 16 + 4 * j, 4), j * 1024)
    PRE = 4
    for hh in range(PRE): issue(hh)
    k.stamp(1)
    OT = lambda s_, i: 152 + (s_ * 2 + i) * 16
    OO = 216
    def ot_stage(hh, n_after):
        k("s_waitcnt vmcnt(%d)", n_after)
        b = SL(hh)
        for r in range(4):
            k("v_cvt_pk_bf16_f32 %s, %s, %s", v(8 + 4 * (hh & 1) + r), v(b + 2 * r), v(b + 2 * r + 1))
        k("s_nop 1")
        for i in range(2):
            k("v_mfma_f32_32x32x16_bf16 %s, %s, %s, 0", v(OT(hh & 1, i), 16), v(8 + 4 * (hh & 1), 4), v(b + 8 + 4 * i, 4))
    def valu_stage(hh):
        for i in range(2):
            D = OT(hh & 1, i)
            t = "v%d" % (16 + i)
            bf16r(k, t, v(D + 8))
        for i in range(2): k("v_add_f32 v%d, 0x358637bd, v%d", 16 + i, 16 + i)
        for i in range(2): bf16r(k, "v%d" % (16 + i), "v%d" % (16 + i))
        for i in range(2): k("v_rcp_f32 v%d, v%d", 16 + i, 16 + i)
        for i in range(2):
            for p_ in range(4):
                D = OT(hh & 1, i)
                k("v_cvt_pk_bf16_f32 %s, %s, %s", v(18 + i * 4 + p_), v(D + 2 * p_), v(D + 2 * p_ + 1))
        for i in range(2):
            for p_ in range(4):
                D = OT(hh & 1, i)
                u = 18 + i * 4 + p_
                k("v_lshlrev_b32 %s, 16, %s", v(D + 2 * p_), v(u))
                k("v_and_b32 %s, 0xffff0000, %s", v(D + 2 * p_ + 1), v(u))
        for i in range(2):
            for p_ in range(4):
                D = OT(hh & 1, i)
                k("v_mul_f32 %s, %s, v%d", v(D + 2 * p_), v(D + 2 * p_), 16 + i)
                k("v_mul_f32 %s, %s, v%d", v(D + 2 * p_ + 1), v(D + 2 * p_ + 1), 16 + i)
        for i in range(2):
            for p_ in range(4):
                D = OT(hh & 1, i)
                k("v_cvt_pk_bf16_f32 %s, %s, %s", v(OO + 4 * i + p_), v(D + 2 * p_), v(D + 2 * p_ + 1))
        k("s_nop 1")
    issued = PRE
    ot_stage(0, 6 * (issued - 1))
    for hh in range(8):
        if issued < 8:
            issue(issued); issued += 1
        elif issued == 8:
            for q in range(4):
                k("buffer_load_dwordx2 %s, v6, s[20:23], 0 offen offset:%d", v(XR + 2 * q, 2), 16 * q)
            issued = 9
        if hh + 1 < 8:
            extra = 4 if issued == 9 else 0
            ot_stage(hh + 1, 6 * (min(issued, 8) - (hh + 2)) + extra)
        k("s_nop 7")
        k("s_nop 7")
        valu_stage(hh)
        b = SL(hh)
        for i in range(2):
            for j in range(2):
                d = a((i * 2 + j) * 16, 16)
                k("v_mfma_f32_32x32x16_bf16 %s, %s, %s, %s", d, v(b + 16 + 4 * j, 4), v(OO + 4 * i, 4), "0" if hh == 0 else d)
    k.stamp(2)
    k.c("cross-wave reduction through LDS: slot (o*4 + w)*4096 + q*1024 + lane*16")
    k("s_lshl_b32 s6, s3, 12")
    k("v_add_u32 v3, s6, v2")
    k("s_nop 15")
    for o in range(4):
        for q in range(4):
            k("ds_write_b128 v3, %s offset:%d", a(o * 16 + q * 4, 4), o * 16384 + q * 1024)
    k("s_waitcnt lgkmcnt(0)")
    k("s_barrier")
    k("s_lshl_b32 s6, s3, 14")
    k("v_add_u32 v3, s6, v2")
    for src in range(4):
        for q in range(4):
            k("ds_read_b128 %s, v3 offset:%d", v(32 + src * 16 + q * 4, 4), src * 4096 + q * 1024)
    k("s_waitcnt lgkmcnt(0)")
    for r in range(16):
        k("v_add_f32 %s, %s, %s", v(32 + r), v(32 + r), v(48 + r))
        k("v_add_f32 %s, %s, %s", v(64 + r), v(64 + r), v(80 + r))
        k("v_add_f32 %s, %s, %s", v(32 + r), v(32 + r), v(64 + r))
    k.stamp(3)
    k("s_waitcnt vmcnt(0)")
    k.c("epilogue: h = bf16(x + bf16(attn))")
    k("v_mov_b32 v8, 0")
    k("v_mov_b32 v9, 0")
    k("v_mov_b32 v10, 0x3f803f80")
    for q in range(4):
        for p in range(2):
            r = 32 + 4 * q + 2 * p
            xr = XR + 2 * q + p
            k("v_cvt_pk_bf16_f32 v13, %s, %s", v(r), v(r + 1))
            k("v_lshlrev_b32 v14, 16, v13")
            k("v_and_b32 v15, 0xffff0000, v13")
            k("v_lshlrev_b32 v12, 16, %s", v(xr))
            k("v_and_b32 v11, 0xffff0000, %s", v(xr))
            k("v_add_f32 v14, v14, v12")
            k("v_add_f32 v15, v15, v11")
            k("v_cvt_pk_bf16_f32 %s, v14, v15", v(96 + 2 * q + p))
            k("v_dot2_f32_bf16 v8, %s, v10, v8", v(96 + 2 * q + p))
            k("v_dot2_f32_bf16 v9, %s, %s, v9", v(96 + 2 * q + p), v(96 + 2 * q + p))
        k("buffer_store_dwordx2 %s, v6, s[24:27], 0 offen offset:%d" + STSUF, v(96 + 2 * q, 2), 16 * q)
    k.c("row stats: combine halves, store (sum,sq) at (row*16 + 2ctile + (w&1))*8")
    k("v_mov_b32 v12, v8")
    k("v_mov_b32 v13, v9")
    k("s_nop 1")
    k("v_permlane32_swap_b32 v8, v12")
    k("v_permlane32_swap_b32 v9, v13")
    k("s_nop 1")
    k("v_add_f32 v8, v8, v12")
    k("v_add_f32 v9, v9, v13")
    k("v_lshrrev_b32 v3, 10, v6")
    k("v_lshlrev_b32 v3, 7, v3")
    k("s_lshl_b32 s6, s5, 1")
    k("s_and_b32 s7, s3, 1")
    k("s_add_u32 s6, s6, s7")
    k("s_lshl_b32 s6, s6, 3")
    k("v_add_u32 v3, s6, v3")
    k("s_mov_b32 exec_hi, 0")
    k("buffer_store_dwordx2 v[8:9], v3, s[28:31], 0 offen")
    k.end()
    k.label("P2_END")
    k("s_endpgm")
    return k.text()
```

```python
from asmlib import *
from common import *
import core1
import epi
from core1 import G1, O_COLSUM, LDS_TOTAL1

NWG3 = 224
LDB3 = 3584
def desc():
    return ("p3_kernel", NWG3, 512, LDS_TOTAL1, p3_kernel(), core1.NV1)

def silu_pair(k, a, b, out, t0, t1):
    k("v_mul_f32 %s, 0xbfb8aa3b, %s", t0, a)
    k("v_mul_f32 %s, 0xbfb8aa3b, %s", t1, b)
    k("v_exp_f32 %s, %s", t0, t0)
    k("v_exp_f32 %s, %s", t1, t1)
    k("v_add_f32 %s, 1.0, %s", t0, t0)
    k("v_add_f32 %s, 1.0, %s", t1, t1)
    k("v_rcp_f32 %s, %s", t0, t0)
    k("v_rcp_f32 %s, %s", t1, t1)
    k("v_mul_f32 %s, %s, %s", a, a, t0)
    k("v_mul_f32 %s, %s, %s", b, b, t1)
    k("v_cvt_pk_bf16_f32 %s, %s, %s", out, a, b)

def p3_kernel():
    g = G1
    k = K("p3")
    k.kid = 2
    k("s_cmp_ge_u32 s2, %d", NWG3)
    k("s_cbranch_scc1 P3_END")
    k.stamp(0)
    k("s_load_dwordx2 s[42:43], s[0:1], 32")
    k("s_load_dwordx2 s[50:51], s[0:1], 64")
    k("v_and_b32 v1, 63, v0")
    k("v_lshrrev_b32 v2, 6, v0")
    k("s_nop 0")
    k("v_readfirstlane_b32 s3, v2")
    k("s_and_b32 s37, s3, 3")
    k("s_lshr_b32 s4, s37, 1")
    k("s_and_b32 s5, s37, 1")
    k("s_and_b32 s6, s2, 7")
    k("s_lshr_b32 s7, s2, 3")
    k("s_and_b32 s31, s6, 3")
    k("s_lshl_b32 s31, s31, 2")
    k("s_and_b32 s32, s7, 3")
    k("s_add_u32 s31, s31, s32")
    k("s_lshr_b32 s32, s6, 2")
    k("s_mul_i32 s32, s32, 7")
    k("s_lshr_b32 s7, s7, 2")
    k("s_add_u32 s32, s32, s7")
    epi.consts(k)
    k("s_waitcnt lgkmcnt(0)")
    srd(k, 8, 50, 51, 0x200000, WS_H)
    srd(k, 12, 42, 43, 512 * 3584)
    srd(k, 16, 50, 51, 64 * 112 * 1024, WS_H1)
    srd(k, 20, 50, 51, 2048 * 128, WS_HST)
    k("s_cmp_ge_u32 s3, 4")
    k("s_cbranch_scc0 P3_COMPUTE")
    core1.emit_dma_offsets(k, LDB3)
    k("v_lshl_add_u32 %s, v10, 4, v11", v(g.VOB))
    k("s_lshl_b32 s28, s31, 17")
    k("s_lshl_b32 s6, s37, 15")
    k("s_add_u32 s28, s28, s6")
    k("s_lshl_b32 s30, s37, 12")
    k("s_add_u32 s30, s30, %d", core1.STG0)
    k("s_mul_i32 s29, s37, %d", 16 * LDB3)
    k("s_lshl_b32 s6, s32, 8")
    k("s_add_u32 s29, s29, s6")
    core1.loader_loop(k, LDB3, 28, 29, 30)
    k("s_endpgm")
    k.label("P3_COMPUTE")
    k.c("hstat lane address: row*128 + h'*64")
    k("v_and_b32 v2, 31, v1")
    k("s_lshl_b32 s6, s31, 7")
    k("s_lshl_b32 s7, s4, 6")
    k("s_add_u32 s6, s6, s7")
    k("v_add_u32 v2, s6, v2")
    k("v_lshlrev_b32 v2, 7, v2")
    k("v_lshrrev_b32 v3, 5, v1")
    k("v_lshl_add_u32 v2, v3, 6, v2")
    HS = g.KEEP
    for i in range(2):
        k("s_xor_b32 s6, s5, %d", i)
        k("s_lshl_b32 s6, s6, 12")
        k("v_add_u32 v3, s6, v2")
        for c in range(4):
            k("buffer_load_dwordx4 %s, v3, s[20:23], 0 offen offset:%d", v(HS + i * 16 + c * 4, 4), c * 16)
    core1.compute_loop(k, True, False, True)
    core1.stats_to_lds(k, False, True)
    k("s_waitcnt vmcnt(0)")
    k.c("row stats from hstat partials")
    for i in range(2):
        b = HS + i * 16
        for c in range(1, 8):
            k("v_add_f32 %s, %s, %s", v(b), v(b), v(b + 2 * c))
            k("v_add_f32 %s, %s, %s", v(b + 1), v(b + 1), v(b + 2 * c + 1))
        k("v_mov_b32 %s, %s", v(b + 2), v(b))
        k("v_mov_b32 %s, %s", v(b + 3), v(b + 1))
        k("s_nop 1")
        k("v_permlane32_swap_b32 %s, %s", v(b), v(b + 2))
        k("v_permlane32_swap_b32 %s, %s", v(b + 1), v(b + 3))
        k("s_nop 1")
        k("v_add_f32 %s, %s, %s", v(b), v(b), v(b + 2))
        k("v_add_f32 %s, %s, %s", v(b + 1), v(b + 1), v(b + 3))
    ln_stats(k, v(HS), v(HS + 1), "v8", "v10", None, None)
    ln_stats(k, v(HS + 16), v(HS + 17), "v12", "v14", None, None)
    epi.load_colsum(k)
    k("s_waitcnt lgkmcnt(0)")
    k("s_lshl_b32 s34, s31, 2")
    k("s_lshl_b32 s6, s4, 1")
    k("s_add_u32 s34, s34, s6")
    k("s_mul_i32 s34, s34, 112")
    k("s_lshl_b32 s6, s32, 3")
    k("s_add_u32 s34, s34, s6")
    k("s_lshl_b32 s6, s5, 2")
    k("s_add_u32 s34, s34, s6")
    k("s_lshl_b32 s34, s34, 10")
    epi.epilogue_T(k, "silu", 112, 34, 16)
    k.end()
    k.label("P3_END")
    k("s_endpgm")
    return k.text()
```

```python
from asmlib import *
from common import *

NWG4 = 256
LDS4 = 65536
import os
DEPTH = int(os.environ.get('P4DEPTH', '8'))
def desc():
    return ("p4_kernel", NWG4, 256, LDS4, p4_kernel(), 320)
def a(i, n=1):
    return "a%d" % i if n == 1 else "a[%d:%d]" % (i, i + n - 1)
FR = 32
HR = 16
def p4_kernel():
    k = K("p4")
    k.kid = 3
    k("s_cmp_ge_u32 s2, %d", NWG4)
    k("s_cbranch_scc1 P4_END")
    k.stamp(0)
    k("s_load_dwordx2 s[40:41], s[0:1], 48")
    k("s_load_dwordx2 s[50:51], s[0:1], 64")
    k("v_and_b32 v1, 63, v0")
    k("v_lshrrev_b32 v2, 6, v0")
    k("s_nop 0")
    k("v_readfirstlane_b32 s3, v2")
    k("s_and_b32 s6, s2, 7")
    k("s_lshr_b32 s7, s2, 3")
    k("s_and_b32 s4, s6, 3")
    k("s_lshl_b32 s4, s4, 3")
    k("s_and_b32 s5, s7, 7")
    k("s_add_u32 s4, s4, s5")
    k("s_lshr_b32 s5, s6, 2")
    k("s_lshl_b32 s5, s5, 2")
    k("s_lshr_b32 s7, s7, 3")
    k("s_add_u32 s5, s5, s7")
    k("v_lshlrev_b32 v2, 4, v1")
    k("v_and_b32 v3, 31, v1")
    k("v_lshrrev_b32 v5, 5, v1")
    k("s_lshl_b32 s6, s4, 6")
    k("s_lshr_b32 s7, s3, 1")
    k("s_lshl_b32 s7, s7, 5")
    k("s_add_u32 s6, s6, s7")
    k("v_add_u32 v6, s6, v3")
    k("v_lshlrev_b32 v6, 10, v6")
    k("v_lshl_add_u32 v6, v5, 3, v6")
    k("s_lshl_b32 s7, s5, 7")
    k("s_and_b32 s8, s3, 1")
    k("s_lshl_b32 s8, s8, 6")
    k("s_add_u32 s7, s7, s8")
    k("v_add_u32 v6, s7, v6")
    k("s_waitcnt lgkmcnt(0)")
    srd(k, 8, 50, 51, 64 * 112 * 1024, WS_H1)
    srd(k, 12, 50, 51, 112 * 16 * 1024, WS_W2P)
    srd(k, 20, 50, 51, 0x200000, WS_H)
    srd(k, 24, 40, 41, 0x200000)
    k.c("bases: A: ((2rbk)*112 + 28w)*1024 (+112K for i=1) ; B: ((28w)*16 + 2ctile)*1024 (+16K per kstep)")
    k("s_mul_i32 s32, s4, 224")
    k("s_mul_i32 s6, s3, 28")
    k("s_add_u32 s32, s32, s6")
    k("s_lshl_b32 s32, s32, 10")
    k("s_lshl_b32 s33, s6, 4")
    k("s_lshl_b32 s7, s5, 1")
    k("s_add_u32 s33, s33, s7")
    k("s_lshl_b32 s33, s33, 10")
    for q in range(4):
        k("buffer_load_dwordx2 %s, v6, s[20:23], 0 offen offset:%d", v(HR + 2 * q, 2), 16 * q)
    def issue(m):
        sl = FR + (m % DEPTH) * 16
        k("s_add_u32 s7, s32, %d", m * 1024)
        k("buffer_load_dwordx4 %s, v2, s[8:11], s7 offen", v(sl, 4))
        k("s_add_u32 s7, s32, %d", m * 1024 + 112 * 1024)
        k("buffer_load_dwordx4 %s, v2, s[8:11], s7 offen", v(sl + 4, 4))
        k("s_add_u32 s7, s33, %d", m * 16384)
        k("buffer_load_dwordx4 %s, v2, s[12:15], s7 offen", v(sl + 8, 4))
        k("buffer_load_dwordx4 %s, v2, s[12:15], s7 offen offset:1024", v(sl + 12, 4))
    for m in range(DEPTH):
        issue(m)
    k.stamp(1)
    NK = 28
    for m in range(NK):
        sl = FR + (m % DEPTH) * 16
        later = min(NK, m + DEPTH) - (m + 1)
        k("s_waitcnt vmcnt(%d)", 4 * later)
        for i in range(2):
            for j in range(2):
                d = a((i * 2 + j) * 16, 16)
                k("v_mfma_f32_32x32x16_bf16 %s, %s, %s, %s", d, v(sl + 8 + 4 * j, 4), v(sl + 4 * i, 4), "0" if m == 0 else d)
        if m + DEPTH < NK:
            issue(m + DEPTH)
    k.stamp(2)
    k("s_lshl_b32 s6, s3, 12")
    k("v_add_u32 v3, s6, v2")
    k("s_nop 15")
    for o in range(4):
        for q in range(4):
            k("ds_write_b128 v3, %s offset:%d", a(o * 16 + q * 4, 4), o * 16384 + q * 1024)
    k("s_waitcnt lgkmcnt(0)")
    k("s_barrier")
    k("s_lshl_b32 s6, s3, 14")
    k("v_add_u32 v3, s6, v2")
    for src in range(4):
        for q in range(4):
            k("ds_read_b128 %s, v3 offset:%d", v(32 + src * 16 + q * 4, 4), src * 4096 + q * 1024)
    k("s_waitcnt lgkmcnt(0)")
    for r in range(16):
        k("v_add_f32 %s, %s, %s", v(32 + r), v(32 + r), v(48 + r))
        k("v_add_f32 %s, %s, %s", v(64 + r), v(64 + r), v(80 + r))
        k("v_add_f32 %s, %s, %s", v(32 + r), v(32 + r), v(64 + r))
    for q in range(4):
        for p in range(2):
            r = 32 + 4 * q + 2 * p
            xr = HR + 2 * q + p
            k("v_cvt_pk_bf16_f32 v13, %s, %s", v(r), v(r + 1))
            k("v_lshlrev_b32 v14, 16, v13")
            k("v_and_b32 v15, 0xffff0000, v13")
            k("v_lshlrev_b32 v12, 16, %s", v(xr))
            k("v_and_b32 v11, 0xffff0000, %s", v(xr))
            k("v_add_f32 v14, v14, v12")
            k("v_add_f32 v15, v15, v11")
            k("v_cvt_pk_bf16_f32 %s, v14, v15", v(96 + 2 * q + p))
        k("buffer_store_dwordx2 %s, v6, s[24:27], 0 offen offset:%d", v(96 + 2 * q, 2), 16 * q)
    k.end()
    k.label("P4_END")
    k("s_endpgm")
    return k.text()
```

```python
import sys
from asmlib import *
from common import *
import p1
from core1 import LDS_TOTAL1
NAME = "sequential_preLN__linear_attn_block__dense_activation_silu__prompt"
HEAD = open("cdna_kernels/%s.s.ref" % NAME).read().split("; Override launch geometry")[0]
def build(kernels):
    out = HEAD
    for (lab, grid, blk, lds, text, nv) in kernels:
        out += "; @launch kernel=%s grid=(%d,1,1) block=(%d,1,1) lds=%d\n" % (lab, grid, blk, lds)
    out += '.amdgcn_target "amdgcn-amd-amdhsa--gfx950"\n.text\n'
    for (lab, grid, blk, lds, text, nv) in kernels:
        out += kernel_header(lab) + text
    out += '.section .rodata,"a"\n'
    for (lab, grid, blk, lds, text, nv) in kernels:
        out += ".p2align 6\n" + kernel_desc(lab, nv, 102, 72)
    return out
if __name__ == "__main__":
    if "--stamps" in sys.argv:
        K.STAMPS = True
        sys.argv.remove("--stamps")
    import core1
    ks = [("p1_kernel", p1.NWG1, 512, LDS_TOTAL1, p1.p1_kernel(), core1.NV1)]
    try:
        import p2; ks.append(p2.desc())
        import p3; ks.append(p3.desc())
        import p4; ks.append(p4.desc())
    except ImportError as e:
        print("missing", e)
    txt = build(ks)
    dst = sys.argv[1] if len(sys.argv) > 1 else "cur.s"
    open(dst, "w").write(txt)
    print("wrote", dst, len(txt))
```

```python
import re
class K:
    STAMPS = False
    kid = 0
    def __init__(self, prefix="k"):
        self.L = []
        self.lbl = 0
        self.prefix = prefix
    def __call__(self, s, *a):
        if a: s = s % a
        if s.startswith("buffer_"):
            m = re.search(r"offset:(\d+)", s)
            assert not m or int(m.group(1)) < 4096, "MUBUF offset too large: " + s
        if s.startswith("ds_"):
            m = re.search(r"offset:(\d+)", s)
            assert not m or int(m.group(1)) < 65536, "DS offset too large: " + s
        self.L.append("  " + s)
    def c(self, s):
        self.L.append("  ; " + s)
    def label(self, name):
        self.L.append(name + ":")
    def new_label(self, p="L"):
        self.lbl += 1
        return "%s_%s_%d" % (self.prefix, p, self.lbl)
    def stamp(self, n):
        if K.STAMPS:
            self("s_memtime s[%d:%d]", 60 + 2 * n, 61 + 2 * n)
            if n == 0: self("s_memrealtime s[72:73]")
    def end(self, wave=0, nostamp=False):
        if K.STAMPS and nostamp:
            self("s_waitcnt lgkmcnt(0)")
            L = self.new_label("Lst")
            self("s_cmp_eq_u32 s3, %d", wave)
            self("s_cbranch_scc0 %s", L)
            self("s_mov_b64 exec, 1")
            self("s_load_dwordx2 s[76:77], s[0:1], 64")
            self("s_waitcnt lgkmcnt(0)")
            self("s_add_u32 s76, s76, 0x%x", 0x1100000 + self.kid * 0x10000)
            self("s_addc_u32 s77, s77, 0")
            self("s_lshl_b32 s78, s2, 6")
            self("v_mov_b32 v2, s78")
            for i in range(8):
                self("v_mov_b32 v4, s%d", 60 + 2 * i)
                self("v_mov_b32 v5, s%d", 61 + 2 * i)
                self("global_store_dwordx2 v2, v[4:5], s[76:77] offset:%d", 8 * i)
            self.label(L)
        elif K.STAMPS:
            self("s_waitcnt vmcnt(0)")
            self.stamp(5)
            self("s_memrealtime s[74:75]")
            self("s_waitcnt lgkmcnt(0)")
            L = self.new_label("Lst")
            self("s_cmp_eq_u32 s3, 0")
            self("s_cbranch_scc0 %s", L)
            self("s_mov_b64 exec, 1")
            self("s_load_dwordx2 s[76:77], s[0:1], 64")
            self("s_waitcnt lgkmcnt(0)")
            self("s_add_u32 s76, s76, 0x%x", 0x1000000 + self.kid * 0x10000)
            self("s_addc_u32 s77, s77, 0")
            self("s_lshl_b32 s78, s2, 6")
            self("v_mov_b32 v2, s78")
            for i in range(8):
                self("v_mov_b32 v4, s%d", 60 + 2 * i)
                self("v_mov_b32 v5, s%d", 61 + 2 * i)
                self("global_store_dwordx2 v2, v[4:5], s[76:77] offset:%d", 8 * i)
            self.label(L)
        self("s_endpgm")
    def text(self):
        return "\n".join(self.L) + "\n"

def v(i, n=1):
    return "v%d" % i if n == 1 else "v[%d:%d]" % (i, i + n - 1)
def s(i, n=1):
    return "s%d" % i if n == 1 else "s[%d:%d]" % (i, i + n - 1)

def kernel_header(name):
    return (".globl %s\n.p2align 8\n.type %s,@function\n%s:\n" % (name, name, name))

def kernel_desc(name, vgpr, sgpr=102, kernarg=72):
    vg = max(8, (vgpr + 7) // 8 * 8)
    return ('.amdhsa_kernel %s\n  .amdhsa_next_free_vgpr %d\n  .amdhsa_next_free_sgpr %d\n  .amdhsa_accum_offset %d\n'
            '  .amdhsa_group_segment_fixed_size 0\n  .amdhsa_kernarg_size %d\n  .amdhsa_user_sgpr_count 2\n'
            '  .amdhsa_user_sgpr_kernarg_segment_ptr 1\n  .amdhsa_system_sgpr_workgroup_id_x 1\n.end_amdhsa_kernel\n'
            % (name, vgpr, sgpr, min(256, (vgpr + 3) // 4 * 4), kernarg))
```

```python
from asmlib import *
from common import *
import os
ABL = os.environ.get('ABL', '')

LDA = 1024
LDS_STAGE = 32768
STG0 = 4096
O_ROWSUM = 0
O_ROWSQ = 512
O_COLSUM = 1024
O_RST = 1536
O_MR = 2048
LDS_TOTAL1 = STG0 + 4 * LDS_STAGE

class G1:
    SEL = 24
    ACC = 32
    FA = 96
    FB = 120
    AADDR = 144
    BADDR = 160
    GRAM = 164
    SUMR = 180
    SUMC = 184
    KEEP = 188
    VOA_E = 32; VOA_O = 33; VOB = 34
NV1 = 224

def emit_dma_offsets(k, ldb):
    g = G1
    k("v_lshrrev_b32 v2, 3, v1")
    k("v_lshlrev_b32 v2, 10, v2")
    k("v_and_b32 v3, 7, v1")
    k("v_lshrrev_b32 v4, 4, v1")
    k("v_xor_b32 v5, v3, v4")
    k("v_lshl_add_u32 %s, v5, 4, v2", v(g.VOA_E))
    k("v_xor_b32 v5, 4, v5")
    k("v_lshl_add_u32 %s, v5, 4, v2", v(g.VOA_O))
    k("v_and_b32 v3, 15, v1")
    k("v_lshlrev_b32 v5, 2, v4")
    k("v_xor_b32 v10, v3, v5")
    k("s_mov_b32 s6, %d", ldb)
    k("v_mul_lo_u32 v11, v4, s6")

def emit_frag_addrs(k):
    g = G1
    k("v_and_b32 v2, 31, v1")
    k("v_lshrrev_b32 v3, 5, v1")
    k("v_lshrrev_b32 v4, 1, v2")
    k("v_and_b32 v4, 7, v4")
    k("v_xor_b32 v4, v4, v3")
    k("v_lshlrev_b32 v5, 7, v2")
    k("s_lshl_b32 s6, s4, 13")
    k("s_add_u32 s6, s6, %d", STG0)
    k("v_add_u32 v5, s6, v5")
    for il in range(2):
        k("s_xor_b32 s6, s5, %d", il)
        k("s_lshl_b32 s6, s6, 12")
        for t in range(4):
            k("v_xor_b32 v6, %d, v4", 2 * t)
            k("v_lshl_add_u32 v6, v6, 4, v5")
            k("v_add_u32 %s, s6, v6", v(g.AADDR + il * 8 + t))
            k("v_add_u32 %s, 0x10000, %s", v(g.AADDR + il * 8 + 4 + t), v(g.AADDR + il * 8 + t))
    k("v_lshrrev_b32 v2, 4, v1")
    k("v_and_b32 v3, 15, v1")
    k("v_lshrrev_b32 v4, 5, v1")
    k("v_lshlrev_b32 v4, 3, v4")
    k("v_lshrrev_b32 v5, 2, v3")
    k("v_add_u32 v4, v4, v5")
    k("v_lshlrev_b32 v4, 8, v4")
    k("v_and_b32 v6, 1, v2")
    k("v_lshlrev_b32 v6, 1, v6")
    k("v_bfe_u32 v7, v3, 1, 1")
    k("v_add_u32 v6, v6, v7")
    k("s_lshl_b32 s6, s5, 3")
    k("v_add_u32 v6, s6, v6")
    k("v_lshlrev_b32 v7, 2, v5")
    k("v_and_b32 v8, 1, v3")
    k("v_lshlrev_b32 v8, 3, v8")
    k("v_add_u32 v4, %d, v4", STG0)
    for tn in range(2):
        k("s_xor_b32 s6, s4, %d", tn)
        k("s_lshl_b32 s6, s6, 2")
        k("v_add_u32 v9, s6, v6")
        k("v_xor_b32 v9, v9, v7")
        k("v_lshlrev_b32 v9, 4, v9")
        k("v_add3_u32 %s, v9, v4, v8", v(g.BADDR + tn))
        k("v_add_u32 %s, 0x10000, %s", v(g.BADDR + 2 + tn), v(g.BADDR + tn))
    k.c("selector: lane (m=l&15, grp=l>>4): ones iff m == (grp&1)")
    k("v_and_b32 v2, 15, v1")
    k("v_bfe_u32 v3, v1, 4, 1")
    k("v_cmp_eq_u32 vcc, v2, v3")
    k("v_mov_b32 v4, 0x3f803f80")
    k("s_nop 0")
    for r in range(4):
        k("v_cndmask_b32 %s, 0, v4, vcc", v(g.SEL + r))

def dma_stage(k, st, ldb, sA_base, sB_base, sW4096):
    g = G1
    b = st % 4
    for qq in range(4):
        k("s_add_u32 m0, %s, %d", s(sW4096), b * LDS_STAGE + qq * 1024)
        k("s_add_u32 s7, %s, %d", s(sA_base), qq * 8 * LDA + st * 128)
        k("buffer_load_dwordx4 %s, s[8:11], s7 offen lds", v(g.VOA_E if qq % 2 == 0 else g.VOA_O))
    for qq in range(4):
        k("s_add_u32 m0, %s, %d", s(sW4096), b * LDS_STAGE + 16384 + qq * 1024)
        k("s_add_u32 s7, %s, %d", s(sB_base), (st * 64 + qq * 4) * ldb)
        k("buffer_load_dwordx4 %s, s[12:15], s7 offen lds", v(g.VOB))

def l2_prefetch(k, ldb, sA_base, sB_base, line1_off):
    k("v_and_b32 v2, 31, v1")
    k("v_lshlrev_b32 v2, 10, v2")
    k("v_lshrrev_b32 v3, 5, v1")
    k("v_lshl_add_u32 v2, v3, 7, v2")
    k("s_add_u32 s7, %s, 512", s(sA_base))
    k("buffer_load_dword v40, v2, s[8:11], s7 offen")
    k("buffer_load_dword v41, v2, s[8:11], s7 offen offset:256")
    k("v_lshrrev_b32 v3, 5, v1")
    k("v_lshlrev_b32 v3, 6, v3")
    k("v_bfe_u32 v4, v1, 1, 4")
    k("v_add_u32 v3, v3, v4")
    k("s_mov_b32 s6, %d", ldb)
    k("v_mul_lo_u32 v3, v3, s6")
    k("v_and_b32 v4, 1, v1")
    k("v_mul_u32_u24 v4, %d, v4", line1_off)
    k("v_add_u32 v3, v3, v4")
    k("s_add_u32 s7, %s, %d", s(sB_base), 256 * ldb)
    k("buffer_load_dword v42, v3, s[12:15], s7 offen")
    k("s_add_u32 s7, %s, %d", s(sB_base), 384 * ldb)
    k("buffer_load_dword v43, v3, s[12:15], s7 offen")
    return 4

def loader_loop(k, ldb, sA_base, sB_base, sW4096, hook_first=None, hook_st0=None, nst=8, line1_off=128, hook_pre=None):
    for st in range(2):
        dma_stage(k, st, ldb, sA_base, sB_base, sW4096)
    if hook_pre: hook_pre(k)
    npf = l2_prefetch(k, ldb, sA_base, sB_base, line1_off) if 'pf' in ABL else 0
    k("s_waitcnt vmcnt(%d)", 8 + npf)
    if K.STAMPS: k("s_memtime s[60:61]")
    k("s_barrier")
    for st in range(2, 4):
        dma_stage(k, st, ldb, sA_base, sB_base, sW4096)
    for st in range(1, nst):
        if st >= 2 and st + 2 < nst:
            dma_stage(k, st + 2, ldb, sA_base, sB_base, sW4096)
        issued = min(nst - 1, max(3, st + 2))
        k("s_waitcnt vmcnt(%d)", 8 * (issued - st) + (npf if st == 1 else 0))
        if st == 1 and hook_first: hook_first(k)
        if st == 4 and hook_st0: hook_st0(k)
        if K.STAMPS: k("s_memtime s[%d:%d]", 60 + 2 * st, 61 + 2 * st)
        k("s_barrier")

def frag_reads(st, t, fb):
    g = G1
    b = st % 4
    hi = 1 if b >= 2 else 0
    bo = (b % 2) * LDS_STAGE
    r = []
    r.append("ds_read_b128 %s, %s offset:%d" % (v(g.FA + fb * 8 + 0, 4), v(g.AADDR + hi * 4 + t), bo))
    for u in range(2):
        r.append("ds_read_b64_tr_b16 %s, %s offset:%d" % (v(g.FB + fb * 8 + 0 + 2 * u, 2), v(g.BADDR + hi * 2 + 0), bo + 16384 + (16 * t + 4 * u) * 256))
    for u in range(2):
        r.append("ds_read_b64_tr_b16 %s, %s offset:%d" % (v(g.FB + fb * 8 + 4 + 2 * u, 2), v(g.BADDR + hi * 2 + 1), bo + 16384 + (16 * t + 4 * u) * 256))
    r.append("ds_read_b128 %s, %s offset:%d" % (v(g.FA + fb * 8 + 4, 4), v(g.AADDR + 8 + hi * 4 + t), bo))
    return r

def mfma(i, j, fb, transposed, first):
    g = G1
    a = v(g.FA + fb * 8 + 4 * i, 4)
    b = v(g.FB + fb * 8 + 4 * j, 4)
    d = v(g.ACC + (i * 2 + j) * 16, 16)
    c = "0" if first else d
    if transposed:
        return "v_mfma_f32_32x32x16_bf16 %s, %s, %s, %s" % (d, b, a, c)
    return "v_mfma_f32_32x32x16_bf16 %s, %s, %s, %s" % (d, a, b, c)

def compute_loop(k, transposed, rowstats, colstats, nst=8):
    g = G1
    NG = 4 * nst
    if os.environ.get('PRIO', '0') == '1': k("s_setprio 1")
    emit_frag_addrs(k)
    k("s_barrier")
    k.stamp(1)
    for r in frag_reads(0, 0, 0): k(r)
    for r in frag_reads(0, 1, 1): k(r)
    for gt in range(NG):
        st, t = divmod(gt, 4)
        cur = gt % 3
        first = (gt == 0)
        g2 = gt + 2
        rd = []
        if t == 2 and st < nst - 1:
            k("s_waitcnt lgkmcnt(0)")
            k("s_barrier")
        else:
            k("s_waitcnt lgkmcnt(%d)", 6 if gt + 1 < NG else 0)
        if g2 < NG:
            rd = frag_reads(g2 // 4, g2 % 4, g2 % 3)
        extra = []
        fa0 = v(g.FA + cur * 8, 4); fb0 = v(g.FB + cur * 8, 4)
        if rowstats:
            extra.append("v_mfma_f32_32x32x16_bf16 %s, %s, %s, %s" % (v(g.GRAM, 16), fa0, fa0, "0" if first else v(g.GRAM, 16)))
            extra.append("v_mfma_f32_16x16x32_bf16 %s, %s, %s, %s" % (v(g.SUMR, 4), v(g.SEL, 4), fa0, "0" if first else v(g.SUMR, 4)))
        if colstats:
            extra.append("v_mfma_f32_16x16x32_bf16 %s, %s, %s, %s" % (v(g.SUMC, 4), v(g.SEL, 4), fb0, "0" if first else v(g.SUMC, 4)))
        order = [(0, 0), (0, 1), (1, 0), (1, 1)]
        for n, (i, j) in enumerate(order):
            k(mfma(i, j, cur, transposed, first))
            for r in rd[2 * n:2 * n + 2]:
                k(r)
            if n < len(extra): k(extra[n])

XFER = STG0
def xfer_read(k):
    g = G1
    k("v_lshlrev_b32 v2, 4, v1")
    k("s_lshl_b32 s6, s37, 13")
    k("v_add_u32 v2, s6, v2")
    for r in range(8):
        k("ds_read_b128 %s, v2 offset:%d", v(g.ACC + 32 + 4 * r, 4), XFER + r * 1024)

def stats_to_lds(k, rowstats, colstats, xfer=False):
    g = G1
    k.stamp(2)
    k("s_nop 15")
    k("s_nop 7")
    if xfer:
        k("v_lshlrev_b32 v2, 4, v1")
        k("s_lshl_b32 s6, s37, 13")
        k("v_add_u32 v2, s6, v2")
        for r in range(8):
            k("ds_write_b128 v2, %s offset:%d", v(g.ACC + 32 + 4 * r, 4), XFER + r * 1024)
    if rowstats:
        k("v_and_b32 v2, 31, v1")
        k("v_and_b32 v3, 3, v2")
        k("v_lshrrev_b32 v4, 3, v2")
        k("v_lshl_add_u32 v3, v4, 2, v3")
        k("v_mov_b32 v8, 0")
        for r in range(16):
            k("v_cmp_eq_u32 vcc, %d, v3", r)
            k("s_nop 1")
            k("v_cndmask_b32 v8, v8, %s, vcc", v(g.GRAM + r))
        k("v_bfe_u32 v4, v2, 2, 1")
        k("v_lshrrev_b32 v5, 5, v1")
        k("v_cmp_eq_u32 vcc, v4, v5")
        k("s_lshl_b32 s6, s4, 8")
        k("s_lshl_b32 s7, s5, 7")
        k("s_add_u32 s6, s6, s7")
        k("v_lshlrev_b32 v6, 2, v2")
        k("v_add_u32 v6, s6, v6")
        k("s_and_saveexec_b64 s[58:59], vcc")
        k("ds_write_b32 v6, v8 offset:%d", O_ROWSQ)
        k("s_mov_b64 exec, s[58:59]")
        k("v_lshlrev_b32 v6, 2, v1")
        k("v_add_u32 v6, s6, v6")
        k("s_mov_b64 exec, 0xffff")
        k("ds_write_b32 v6, %s offset:%d", v(g.SUMR), O_ROWSUM)
        k("ds_write_b32 v6, %s offset:%d", v(g.SUMR + 1), O_ROWSUM + 64)
        k("s_mov_b64 exec, -1")
    if colstats:
        k("s_lshl_b32 s6, s5, 8")
        k("s_lshl_b32 s7, s4, 7")
        k("s_add_u32 s6, s6, s7")
        k("v_lshlrev_b32 v6, 2, v1")
        k("v_add_u32 v6, s6, v6")
        k("s_mov_b64 exec, 0xffff")
        k("ds_write_b32 v6, %s offset:%d", v(g.SUMC), O_COLSUM)
        k("ds_write_b32 v6, %s offset:%d", v(g.SUMC + 1), O_COLSUM + 64)
        k("s_mov_b64 exec, -1")
    k("s_waitcnt lgkmcnt(0)")
    k("s_barrier")
    k.stamp(3)
```

```python
from asmlib import *
from common import *
import core1
import epi
from core1 import G1, O_ROWSUM, O_ROWSQ, O_COLSUM, O_RST, O_MR, LDS_TOTAL1

NWG1 = 228
LDB1 = 3072

def q_epilogue(k, ils):
    k("v_and_b32 v2, 31, v1")
    k("v_lshlrev_b32 v4, 2, v2")
    k("s_lshl_b32 s6, s4, 8")
    k("v_add_u32 v4, s6, v4")
    for il in ils:
        k("s_xor_b32 s6, s5, %d", il)
        k("s_lshl_b32 s6, s6, 7")
        k("v_add_u32 v7, s6, v4")
        k("ds_read_b32 %s, v7 offset:%d", "v24" if il == 0 else "v26", O_ROWSUM)
        k("ds_read_b32 %s, v7 offset:%d", "v25" if il == 0 else "v27", O_ROWSQ)
    epi.load_colsum(k)
    k("s_waitcnt lgkmcnt(0)")
    for il in ils:
        if il == 0: ln_stats(k, "v24", "v25", "v8", "v10", None, None)
        else: ln_stats(k, "v26", "v27", "v12", "v14", None, None)
    k("s_lshl_b32 s34, s31, 2")
    k("s_lshl_b32 s6, s4, 1")
    k("s_add_u32 s34, s34, s6")
    k("s_lshl_b32 s34, s34, 5")
    k("s_lshl_b32 s6, s32, 3")
    k("s_add_u32 s34, s34, s6")
    k("s_lshl_b32 s6, s5, 2")
    k("s_add_u32 s34, s34, s6")
    k("s_lshl_b32 s34, s34, 10")
    epi.epilogue_T(k, "phi", 32, 34, 16, ils)

def kv_epilogue(k, il):
    g = G1
    sfx = "A" if il == 0 else "B"
    if il == 0:
        k("s_lshl_b32 s6, s34, 2")
        k("s_add_u32 s6, s6, 32")
        k("v_mov_b32 v7, s6")
        k("buffer_load_dword v23, v7, s[24:27], 0 offen sc1")
    k("v_lshlrev_b32 v4, 2, v1")
    k("s_lshl_b32 s6, s4, 8")
    k("v_add_u32 v4, s6, v4")
    k("ds_read_b32 v8, v4 offset:%d", O_ROWSUM)
    k("ds_read_b32 v10, v4 offset:%d", O_ROWSQ)
    k("v_and_b32 v2, 31, v1")
    k("v_lshlrev_b32 v5, 2, v2")
    k("s_lshl_b32 s6, s5, 8")
    k("v_add_u32 v5, s6, v5")
    k("ds_read_b32 v28, v5 offset:%d", O_COLSUM)
    k("ds_read_b32 v30, v5 offset:%d", O_COLSUM + 128)
    k("s_waitcnt lgkmcnt(0)")
    k("s_cmp_eq_u32 s4, 0")
    k("s_cbranch_scc1 P1_NOSWAP%s", sfx)
    for r in range(16):
        k("v_swap_b32 %s, %s", v(g.ACC + il * 32 + r), v(g.ACC + il * 32 + 16 + r))
    k.label("P1_NOSWAP" + sfx)
    ln_stats(k, "v8", "v10", "v12", "v13", None, None)
    k("ds_write_b32 v4, v12 offset:%d", O_RST)
    k("ds_write_b32 v4, v13 offset:%d", O_MR)
    k("s_waitcnt lgkmcnt(0)")
    k("v_lshrrev_b32 v3, 5, v1")
    k("v_lshlrev_b32 v5, 4, v3")
    k("s_lshl_b32 s6, s4, 8")
    k("v_add_u32 v5, s6, v5")
    RST = 96; MRR = 112
    KP = g.KEEP; VP = g.KEEP + 8
    k("s_xor_b32 s6, s5, %d", il)
    k("s_lshl_b32 s6, s6, 7")
    k("v_add_u32 v6, s6, v5")
    for q in range(4):
        k("ds_read_b128 %s, v6 offset:%d", v(RST + q * 4, 4), O_RST + 32 * q)
        k("ds_read_b128 %s, v6 offset:%d", v(MRR + q * 4, 4), O_MR + 32 * q)
    k("s_waitcnt lgkmcnt(0)")
    for j in range(2):
        a0 = g.ACC + (il * 2 + j) * 16
        for b in range(2):
            epi.act_batch(k, "phi" if j == 0 else "none", a0 + 8 * b, 28 if j == 0 else 30, RST + 8 * b, MRR + 8 * b, normal=True,
                          out=(KP if j == 0 else VP) + 4 * b)
    for r in range(4):
        k("v_mov_b32 %s, 0x3f803f80", v(24 + r))
    k("s_nop 1")
    DKV = 96; DZ = 112
    for u in range(2):
        k("v_mfma_f32_32x32x16_bf16 %s, %s, %s, %s", v(DKV, 16), v(VP + 4 * u, 4), v(KP + 4 * u, 4), "0" if u == 0 else v(DKV, 16))
    for u in range(2):
        k("v_mfma_f32_32x32x16_bf16 %s, v[24:27], %s, %s", v(DZ, 16), v(KP + 4 * u, 4), "0" if u == 0 else v(DZ, 16))
    k("v_and_b32 v3, 16, v1")
    k("v_cmp_ne_u32 vcc, 0, v3")
    k("v_lshlrev_b32 v2, 4, v1")
    k("s_lshl_b32 s6, s37, 13")
    k("v_add_u32 v2, s6, v2")
    k("s_nop 15")
    k.c("select the useful 8 regs: lanes with (l&16) use regs 8..15")
    for i8 in range(8):
        k("v_cndmask_b32 %s, %s, %s, vcc", v(DKV + i8), v(DKV + i8), v(DKV + 8 + i8))
    CMB = core1.STG0 + 32768
    k.c("every wave publishes its partial: slot w8 (2560 B)")
    k("v_lshlrev_b32 v2, 4, v1")
    k("s_mul_i32 s6, s3, 2560")
    k("v_add_u32 v2, s6, v2")
    k("v_lshlrev_b32 v6, 2, v1")
    k("v_add_u32 v6, s6, v6")
    k("ds_write_b128 v2, %s offset:%d", v(DKV, 4), CMB)
    k("ds_write_b128 v2, %s offset:%d", v(DKV + 4, 4), CMB + 1024)
    k("ds_write_b32 v6, %s offset:%d", v(DZ), CMB + 2048)
    k("s_waitcnt lgkmcnt(0)")
    k("s_barrier")
    if il == 1:
        return
    k("s_cmp_ge_u32 s3, 2")
    k("s_cbranch_scc1 P1_KVDONE")
    for n in range(3):
        k("ds_read_b128 %s, v2 offset:%d", v(128 + 12 * n, 4), CMB + (n + 1) * 5120)
        k("ds_read_b128 %s, v2 offset:%d", v(132 + 12 * n, 4), CMB + (n + 1) * 5120 + 1024)
        k("ds_read_b32 %s, v6 offset:%d", v(136 + 12 * n), CMB + (n + 1) * 5120 + 2048)
    k.c("address: head*1088 + (4h'*16 + d)*4 ; head = 4j + 2wc + ((l>>4)&1)")
    k("v_bfe_u32 v2, v1, 4, 1")
    k("s_lshl_b32 s6, s34, 2")
    k("s_lshl_b32 s7, s5, 1")
    k("s_add_u32 s6, s6, s7")
    k("v_add_u32 v2, s6, v2")
    k("s_movk_i32 s6, 1088")
    k("v_mul_lo_u32 v2, v2, s6")
    k("v_lshrrev_b32 v3, 5, v1")
    k("v_lshl_add_u32 v2, v3, 8, v2")
    k("v_and_b32 v3, 15, v1")
    k("v_lshl_add_u32 v2, v3, 2, v2")
    k("s_waitcnt lgkmcnt(0)")
    for n in range(3):
        for i8 in range(8):
            k("v_add_f32 %s, %s, %s", v(DKV + i8), v(DKV + i8), v(128 + 12 * n + i8))
        k("v_add_f32 %s, %s, %s", v(DZ), v(DZ), v(136 + 12 * n))
    k.label("P1_POLL")
    k("s_waitcnt vmcnt(0)")
    k("v_readfirstlane_b32 s6, v23")
    k("s_cmp_eq_u32 s6, 1")
    k("s_cbranch_scc1 P1_POLLED")
    k("buffer_load_dword v23, v7, s[24:27], 0 offen sc1")
    k("s_branch P1_POLL")
    k.label("P1_POLLED")
    for i8 in range(8):
        k("buffer_atomic_add_f32 %s, v2, s[20:23], 0 offen offset:%d", v(DKV + i8), ((i8 & 3) + 8 * (i8 >> 2)) * 64)
    k("s_mov_b32 exec_hi, 0")
    k("buffer_atomic_add_f32 %s, v2, s[20:23], 0 offen offset:1024", v(DZ))
    k("s_mov_b64 exec, -1")
    k.label("P1_KVDONE")

def p1_kernel():
    g = G1
    k = K("p1")
    k.kid = 0
    k("s_cmp_ge_u32 s2, %d", NWG1)
    k("s_cbranch_scc1 P1_END")
    k.stamp(0)
    k("s_load_dwordx4 s[40:43], s[0:1], 0")
    k("s_load_dwordx2 s[44:45], s[0:1], 16")
    k("s_load_dwordx2 s[46:47], s[0:1], 40")
    k("s_load_dwordx4 s[48:51], s[0:1], 56")
    k("v_and_b32 v1, 63, v0")
    k("v_lshrrev_b32 v2, 6, v0")
    k("s_nop 0")
    k("v_readfirstlane_b32 s3, v2")
    k("s_and_b32 s37, s3, 3")
    k("s_lshr_b32 s4, s37, 1")
    k("s_and_b32 s5, s37, 1")
    k("s_cmp_ge_u32 s2, 192")
    k("s_cbranch_scc1 P1_REPACK")
    k.c("tile mapping (XCD-aware): x=wg&7,i=wg>>3 ; rb=(x&3)*4+(i&3) ; ct=(x>>2)*6+(i>>2)")
    k("s_and_b32 s6, s2, 7")
    k("s_lshr_b32 s7, s2, 3")
    k("s_and_b32 s31, s6, 3")
    k("s_lshl_b32 s31, s31, 2")
    k("s_and_b32 s32, s7, 3")
    k("s_add_u32 s31, s31, s32")
    k("s_lshr_b32 s32, s6, 2")
    k("s_mul_i32 s32, s32, 6")
    k("s_lshr_b32 s7, s7, 2")
    k("s_add_u32 s32, s32, s7")
    k("s_sub_u32 s34, s32, 4")
    epi.consts(k)
    k("s_waitcnt lgkmcnt(0)")
    srd(k, 8, 40, 41, 2048 * 1024)
    srd(k, 12, 42, 43, 512 * 3072)
    srd(k, 16, 50, 51, 0x200000, WS_PQ)
    srd(k, 20, 50, 51, 32 * 1088, WS_KV)
    srd(k, 24, 48, 49, 256)
    k("s_cmp_ge_u32 s3, 4")
    k("s_cbranch_scc1 P1_LOADER")
    k("s_cmp_lt_u32 s32, 4")
    k("s_cbranch_scc0 P1_KV")
    core1.compute_loop(k, True, True, True)
    core1.stats_to_lds(k, True, True, xfer=True)
    q_epilogue(k, (0,))
    k.end()
    k.label("P1_LOADER")
    core1.emit_dma_offsets(k, LDB1)
    k("s_lshl_b32 s28, s31, 17")
    k("s_lshl_b32 s6, s37, 15")
    k("s_add_u32 s28, s28, s6")
    k("s_lshl_b32 s30, s37, 12")
    k("s_add_u32 s30, s30, %d", core1.STG0)
    k("s_mul_i32 s29, s37, %d", 16 * LDB1)
    k("s_mov_b32 s33, 1")
    k("v_mov_b32 v23, 1")
    k("s_cmp_lt_u32 s32, 4")
    k("s_cbranch_scc0 P1_LKV")
    k("v_lshl_add_u32 %s, v10, 4, v11", v(g.VOB))
    k("s_lshl_b32 s6, s32, 8")
    k("s_add_u32 s29, s29, s6")
    k("s_branch P1_LGO")
    k.label("P1_LKV")
    k("v_bfe_u32 v2, v10, 2, 1")
    k("v_lshlrev_b32 v2, 10, v2")
    k("v_lshrrev_b32 v3, 3, v10")
    k("v_lshl_add_u32 v2, v3, 6, v2")
    k("v_and_b32 v3, 3, v10")
    k("v_lshl_add_u32 v2, v3, 4, v2")
    k("v_add_u32 %s, v2, v11", v(g.VOB))
    k("s_lshl_b32 s6, s34, 7")
    k("s_add_u32 s29, s29, s6")
    k("s_add_u32 s29, s29, 1024")
    k.label("P1_LGO")
    def hook_ticket(k):
        k.c("ticket (loader wave 4 only)")
        k("s_cmp_eq_u32 s3, 4")
        k("s_cbranch_scc0 P1_NOTICK")
        k("s_lshl_b32 s6, s34, 2")
        k("v_mov_b32 v3, s6")
        k("s_mov_b64 exec, 1")
        k("buffer_atomic_add v23, v3, s[24:27], 0 offen sc0")
        k("s_mov_b64 exec, -1")
        k.label("P1_NOTICK")
    def hook_first(k):
        k("v_readfirstlane_b32 s33, v23")
        k("s_nop 0")
        k("s_cmp_eq_u32 s33, 0")
        k("s_cbranch_scc0 P1_NOZERO")
        k.c("owner: zero the kv accumulators of this column tile (4352 bytes)")
        k("s_mul_i32 s6, s34, 4352")
        k("s_add_u32 s6, s6, 0x%x", WS_KV)
        k("s_add_u32 s80, s50, s6")
        k("s_addc_u32 s81, s51, 0")
        k("s_mov_b32 s82, 4352")
        k("s_mov_b32 s83, 0x20000")
        k("v_mov_b32 v28, 0"); k("v_mov_b32 v29, 0"); k("v_mov_b32 v30, 0"); k("v_mov_b32 v31, 0")
        k("v_lshlrev_b32 v2, 4, v1")
        for z in range(4):
            k("buffer_store_dwordx4 v[28:31], v2, s[80:83], 0 offen offset:%d sc1", z * 1024)
        k("v_add_u32 v2, 4096, v2")
        k("buffer_store_dwordx4 v[28:31], v2, s[80:83], 0 offen sc1")
        k.label("P1_NOZERO")
    def hook_flag(k):
        k("s_cmp_eq_u32 s33, 0")
        k("s_cbranch_scc0 P1_NOFLAG")
        k("s_lshl_b32 s6, s34, 2")
        k("s_add_u32 s6, s6, 32")
        k("v_mov_b32 v3, s6")
        k("v_mov_b32 v2, 1")
        k("s_mov_b64 exec, 1")
        k("buffer_store_dword v2, v3, s[24:27], 0 offen sc1")
        k("s_mov_b64 exec, -1")
        k.label("P1_NOFLAG")
    k("s_cmp_lt_u32 s32, 4")
    k("s_cbranch_scc0 P1_LLKV")
    core1.loader_loop(k, LDB1, 28, 29, 30, None, None, line1_off=128)
    k("s_barrier")
    core1.xfer_read(k)
    q_epilogue(k, (1,))
    k("s_endpgm")
    k.label("P1_LLKV")
    core1.loader_loop(k, LDB1, 28, 29, 30, hook_first, hook_flag, line1_off=1024, hook_pre=hook_ticket)
    k("s_barrier")
    core1.xfer_read(k)
    kv_epilogue(k, 1)
    k("s_endpgm")
    k.label("P1_KV")
    core1.compute_loop(k, False, True, True)
    core1.stats_to_lds(k, True, True, xfer=True)
    kv_epilogue(k, 0)
    k.end()
    k.label("P1_REPACK")
    k("s_cmp_ge_u32 s3, 4")
    k("s_cbranch_scc0 P1_REPACK2")
    if os.environ.get('W1PF', '1') == '1':
        k.c("idle waves: touch w1 lines (prefetch towards cache for P3)")
        k("s_load_dwordx2 s[42:43], s[0:1], 32")
        k("s_sub_u32 s31, s2, 192")
        k("s_lshl_b32 s31, s31, 2")
        k("s_add_u32 s31, s31, s37")
        k("s_lshl_b32 s31, s31, 14")
        k("v_lshlrev_b32 v2, 7, v1")
        k("s_waitcnt lgkmcnt(0)")
        srd(k, 8, 42, 43, 512 * 3584)
        k("buffer_load_dword v3, v2, s[8:11], s31 offen")
        k("s_add_u32 s31, s31, 8192")
        k("buffer_load_dword v4, v2, s[8:11], s31 offen")
    k("s_endpgm")
    k.label("P1_REPACK2")
    k("s_sub_u32 s31, s2, 192")
    k("s_waitcnt lgkmcnt(0)")
    k("s_cmp_lt_u32 s31, 28")
    k("s_cbranch_scc0 P1_RP_WO")
    srd(k, 8, 46, 47, 1792 * 1024)
    srd(k, 16, 50, 51, 112 * 16 * 1024, WS_W2P)
    k("s_branch P1_RP_GO")
    k.label("P1_RP_WO")
    k("s_sub_u32 s31, s31, 28")
    srd(k, 8, 44, 45, 512 * 1024)
    srd(k, 16, 50, 51, 32 * 16 * 1024, WS_WOP)
    k.label("P1_RP_GO")
    k("v_lshlrev_b32 v2, 4, v1")
    k("s_lshl_b32 s6, s31, 16")
    k("s_lshl_b32 s7, s3, 14")
    k("s_add_u32 s6, s6, s7")
    for q in range(16):
        k("s_add_u32 m0, s7, %d", q * 1024)
        k("s_add_u32 s28, s6, %d", q * 1024)
        k("buffer_load_dwordx4 v2, s[8:11], s28 offen lds")
    k("v_lshrrev_b32 v3, 5, v1")
    k("v_lshlrev_b32 v3, 2, v3")
    k("v_bfe_u32 v4, v1, 2, 2")
    k("v_add_u32 v3, v3, v4")
    k("v_lshlrev_b32 v3, 10, v3")
    k("v_add_u32 v3, s7, v3")
    k("v_bfe_u32 v4, v1, 4, 1")
    k("v_lshl_add_u32 v3, v4, 5, v3")
    k("v_and_b32 v4, 3, v1")
    k("v_lshl_add_u32 v3, v4, 3, v3")
    k("s_lshl_b32 s6, s31, 2")
    k("s_add_u32 s6, s6, s3")
    k("s_lshl_b32 s6, s6, 14")
    k("s_waitcnt vmcnt(0)")
    for j in range(16):
        rr = 16 + (j % 4) * 4
        k("ds_read_b64_tr_b16 %s, v3 offset:%d", v(rr, 2), j * 64)
        k("ds_read_b64_tr_b16 %s, v3 offset:%d", v(rr + 2, 2), 8192 + j * 64)
        k("s_waitcnt lgkmcnt(0)")
        k("s_add_u32 s7, s6, %d", j * 1024)
        k("buffer_store_dwordx4 %s, v2, s[16:19], s7 offen" + STSUF, v(rr, 4))
    k.end()
    k.label("P1_END")
    k("s_endpgm")
    return k.text()
```

```python
from asmlib import *
from common import *
import core1
import epi
from core1 import G1, O_COLSUM, LDS_TOTAL1

NWG3 = 224
LDB3 = 3584
def desc():
    return ("p3_kernel", NWG3, 512, LDS_TOTAL1, p3_kernel(), core1.NV1)

def silu_pair(k, a, b, out, t0, t1):
    k("v_mul_f32 %s, 0xbfb8aa3b, %s", t0, a)
    k("v_mul_f32 %s, 0xbfb8aa3b, %s", t1, b)
    k("v_exp_f32 %s, %s", t0, t0)
    k("v_exp_f32 %s, %s", t1, t1)
    k("v_add_f32 %s, 1.0, %s", t0, t0)
    k("v_add_f32 %s, 1.0, %s", t1, t1)
    k("v_rcp_f32 %s, %s", t0, t0)
    k("v_rcp_f32 %s, %s", t1, t1)
    k("v_mul_f32 %s, %s, %s", a, a, t0)
    k("v_mul_f32 %s, %s, %s", b, b, t1)
    k("v_cvt_pk_bf16_f32 %s, %s, %s", out, a, b)

def p3_kernel():
    g = G1
    k = K("p3")
    k.kid = 2
    k("s_cmp_ge_u32 s2, %d", NWG3)
    k("s_cbranch_scc1 P3_END")
    k.stamp(0)
    k("s_load_dwordx2 s[42:43], s[0:1], 32")
    k("s_load_dwordx2 s[50:51], s[0:1], 64")
    k("v_and_b32 v1, 63, v0")
    k("v_lshrrev_b32 v2, 6, v0")
    k("s_nop 0")
    k("v_readfirstlane_b32 s3, v2")
    k("s_and_b32 s37, s3, 3")
    k("s_lshr_b32 s4, s37, 1")
    k("s_and_b32 s5, s37, 1")
    k("s_and_b32 s6, s2, 7")
    k("s_lshr_b32 s7, s2, 3")
    k("s_and_b32 s31, s6, 3")
    k("s_lshl_b32 s31, s31, 2")
    k("s_and_b32 s32, s7, 3")
    k("s_add_u32 s31, s31, s32")
    k("s_lshr_b32 s32, s6, 2")
    k("s_mul_i32 s32, s32, 7")
    k("s_lshr_b32 s7, s7, 2")
    k("s_add_u32 s32, s32, s7")
    epi.consts(k)
    k("s_waitcnt lgkmcnt(0)")
    srd(k, 8, 50, 51, 0x200000, WS_H)
    srd(k, 12, 42, 43, 512 * 3584)
    srd(k, 16, 50, 51, 64 * 112 * 1024, WS_H1)
    srd(k, 20, 50, 51, 2048 * 128, WS_HST)
    def hstat_loads(ils):
        k("v_and_b32 v2, 31, v1")
        k("s_lshl_b32 s6, s31, 7")
        k("s_lshl_b32 s7, s4, 6")
        k("s_add_u32 s6, s6, s7")
        k("v_add_u32 v2, s6, v2")
        k("v_lshlrev_b32 v2, 7, v2")
        k("v_lshrrev_b32 v3, 5, v1")
        k("v_lshl_add_u32 v2, v3, 6, v2")
        for i in ils:
            k("s_xor_b32 s6, s5, %d", i)
            k("s_lshl_b32 s6, s6, 12")
            k("v_add_u32 v3, s6, v2")
            for c in range(4):
                k("buffer_load_dwordx4 %s, v3, s[20:23], 0 offen offset:%d", v(g.KEEP + i * 16 + c * 4, 4), c * 16)
    def p3_epilogue(ils):
        HS = g.KEEP
        k("s_waitcnt vmcnt(0)")
        for i in ils:
            b = HS + i * 16
            for c in range(1, 8):
                k("v_add_f32 %s, %s, %s", v(b), v(b), v(b + 2 * c))
                k("v_add_f32 %s, %s, %s", v(b + 1), v(b + 1), v(b + 2 * c + 1))
            k("v_mov_b32 %s, %s", v(b + 2), v(b))
            k("v_mov_b32 %s, %s", v(b + 3), v(b + 1))
            k("s_nop 1")
            k("v_permlane32_swap_b32 %s, %s", v(b), v(b + 2))
            k("v_permlane32_swap_b32 %s, %s", v(b + 1), v(b + 3))
            k("s_nop 1")
            k("v_add_f32 %s, %s, %s", v(b), v(b), v(b + 2))
            k("v_add_f32 %s, %s, %s", v(b + 1), v(b + 1), v(b + 3))
        for i in ils:
            ln_stats(k, v(HS + 16 * i), v(HS + 16 * i + 1), "v%d" % (8 + 4 * i), "v%d" % (10 + 4 * i), None, None)
        epi.load_colsum(k)
        k("s_waitcnt lgkmcnt(0)")
        k("s_lshl_b32 s34, s31, 2")
        k("s_lshl_b32 s6, s4, 1")
        k("s_add_u32 s34, s34, s6")
        k("s_mul_i32 s34, s34, 112")
        k("s_lshl_b32 s6, s32, 3")
        k("s_add_u32 s34, s34, s6")
        k("s_lshl_b32 s6, s5, 2")
        k("s_add_u32 s34, s34, s6")
        k("s_lshl_b32 s34, s34, 10")
        epi.epilogue_T(k, "silu", 112, 34, 16, ils)
    k("s_cmp_ge_u32 s3, 4")
    k("s_cbranch_scc0 P3_COMPUTE")
    hstat_loads((1,))
    core1.emit_dma_offsets(k, LDB3)
    k("v_lshl_add_u32 %s, v10, 4, v11", v(g.VOB))
    k("s_lshl_b32 s28, s31, 17")
    k("s_lshl_b32 s6, s37, 15")
    k("s_add_u32 s28, s28, s6")
    k("s_lshl_b32 s30, s37, 12")
    k("s_add_u32 s30, s30, %d", core1.STG0)
    k("s_mul_i32 s29, s37, %d", 16 * LDB3)
    k("s_lshl_b32 s6, s32, 8")
    k("s_add_u32 s29, s29, s6")
    core1.loader_loop(k, LDB3, 28, 29, 30)
    k("s_barrier")
    core1.xfer_read(k)
    p3_epilogue((1,))
    k("s_endpgm")
    k.label("P3_COMPUTE")
    hstat_loads((0,))
    core1.compute_loop(k, True, False, True)
    core1.stats_to_lds(k, False, True, xfer=True)
    p3_epilogue((0,))
    k.end()
    k.label("P3_END")
    k("s_endpgm")
    return k.text()
```

```python
import sys
from asmlib import *
from common import *
import p1
from core1 import LDS_TOTAL1
NAME = "sequential_preLN__linear_attn_block__dense_activation_silu__prompt"
HEAD = open("cdna_kernels/%s.s.ref" % NAME).read().split("; Override launch geometry")[0]
DESIGN_NOTES = """; ---------------------------------------------------------------------------------------------------------------
; ---------------------------------------------------------------------------------------------------------------
"""
def build(kernels):
    out = HEAD
    for (lab, grid, blk, lds, text, nv) in kernels:
        out += "; @launch kernel=%s grid=(%d,1,1) block=(%d,1,1) lds=%d\n" % (lab, grid, blk, lds)
    out += DESIGN_NOTES
    out += '.amdgcn_target "amdgcn-amd-amdhsa--gfx950"\n.text\n'
    for (lab, grid, blk, lds, text, nv) in kernels:
        out += kernel_header(lab) + text
    out += '.section .rodata,"a"\n'
    for (lab, grid, blk, lds, text, nv) in kernels:
        out += ".p2align 6\n" + kernel_desc(lab, nv, 102, 72)
    return out
if __name__ == "__main__":
    if "--stamps" in sys.argv:
        K.STAMPS = True
        sys.argv.remove("--stamps")
    import core1
    ks = [("p1_kernel", p1.NWG1, 512, LDS_TOTAL1, p1.p1_kernel(), core1.NV1)]
    try:
        import p2; ks.append(p2.desc())
        import p3; ks.append(p3.desc())
        import p4; ks.append(p4.desc())
    except ImportError as e:
        print("missing", e)
    txt = build(ks)
    dst = sys.argv[1] if len(sys.argv) > 1 else "cur.s"
    open(dst, "w").write(txt)
    print("wrote", dst, len(txt))
```
